```python
import torch

def _softmax(x, axis=-1):
    return torch.softmax(x, dim=axis)
def _gelu(x):
    return torch.nn.functional.gelu(x, approximate="tanh")
def _silu(x):
    return torch.nn.functional.silu(x)
def _sigmoid(x):
    return torch.sigmoid(x)
def _layernorm(x, axis=-1, eps=1e-5):
    m = x.mean(dim=axis, keepdim=True)
    v = x.var(dim=axis, keepdim=True, unbiased=False)
    return (x - m) / torch.sqrt(v + eps)
def _scatter_add(tgt, idx, src, axis=0):
    return tgt.clone().index_add_(axis, idx, src)
def _segment_sum(src, seg, n):
    out = torch.zeros((n,) + src.shape[1:], dtype=src.dtype)
    return out.index_add_(0, seg, src)
def _pad(x, pw):
    flat = tuple(v for pair in reversed(pw) for v in pair)
    return torch.nn.functional.pad(x, flat)

kernel_name = 'standalone__gqa_block_cached__near_ridge'

def setup_inputs():

    _w = (lambda a: (lambda t: t.to(torch.bfloat16) if t.is_floating_point() else t)(torch.as_tensor(a)))
    B, Sq, D = 16, 32, 640
    Hq, Hkv, Sk, Dh = 32, 32, 32, 192
    assert Hq % Hkv == 0, (Hq, Hkv)
    return {
        "x": _w((lambda *s: torch.randn(*s, dtype=torch.bfloat16) * 0.8)(B, Sq, D)),
        "k_cache": _w((lambda *s: torch.randn(*s, dtype=torch.bfloat16) * 0.8)(B, Hkv, Sk, Dh)),
        "v_cache": _w((lambda *s: torch.randn(*s, dtype=torch.bfloat16) * 0.05)(B, Hkv, Sk, Dh)),
        "wq": _w((lambda *s: torch.randn(*s, dtype=torch.bfloat16) * 0.8)(D, Hq * Dh) * (D ** -0.5)),
        "wo": _w((lambda *s: torch.randn(*s, dtype=torch.bfloat16) * 0.05)(Hq * Dh, D) * ((Hq * Dh) ** -0.5)),
    }

def reference(x, k_cache, v_cache, wq, wo):
    B, Sq, D = x.shape
    Hq, Dh = 32, 192
    Hkv = k_cache.shape[1]
    rep = Hq // Hkv
    q = (lambda x, *d: x.permute(*d))((x @ wq).reshape(B, Sq, Hq, Dh), 0, 2, 1, 3)
    k = (lambda x, n, axis: torch.repeat_interleave(x, n, dim=axis))(k_cache, rep, axis=1)
    v = (lambda x, n, axis: torch.repeat_interleave(x, n, dim=axis))(v_cache, rep, axis=1)
    scores = torch.einsum("bhqd,bhkd->bhqk", q, k) * (Dh ** -0.5)
    p = _softmax(scores, axis=-1)
    o = torch.einsum("bhqk,bhkd->bhqd", p, v)
    return (lambda x, *d: x.permute(*d))(o, 0, 2, 1, 3).reshape(B, Sq, Hq * Dh) @ wo
```

```python
import re

class I:
    __slots__ = ("txt", "tag", "opt")
    def __init__(self, txt, tag=None, opt=None):
        self.txt = txt; self.tag = tag; self.opt = opt
    def __repr__(self): return self.txt

def regs_of(op):
    op = op.strip()
    m = re.fullmatch(r"-?\|?([vas])(\d+)\|?", op)
    if m: return [(m.group(1), int(m.group(2)))]
    m = re.fullmatch(r"-?([vas])\[(\d+):(\d+)\]", op)
    if m: return [(m.group(1), r) for r in range(int(m.group(2)), int(m.group(3)) + 1)]
    if op == "vcc": return [("s", 106), ("s", 107)]
    if op == "m0": return [("m", 0)]
    if op in ("exec", "exec_hi", "exec_lo"): return [("e", 0)]
    return []

TRANS = ("v_exp_f32", "v_log_f32", "v_rcp_f32", "v_rsq_f32", "v_sqrt_f32")

def parse(txt):
    t = txt.split(";")[0].strip()
    if not t or t.endswith(":") or t.startswith("."):
        return None
    parts = t.split(None, 1)
    mn = parts[0]
    ops = []
    if len(parts) > 1:
        ops = [o.strip() for o in parts[1].split(",")]
        last = ops[-1].split()
        mods = last[1:]
        ops[-1] = last[0]
    else:
        mods = []
    R = [regs_of(o) for o in ops]
    d = dict(mn=mn, kind="other", wr=[], rd=[], mods=mods, srcc=[], ab=[], sdata=[])
    flat = lambda xs: [r for x in xs for r in x]
    if mn.startswith("v_mfma"):
        d.update(kind="mfma", wr=R[0], rd=flat(R[1:]), srcc=R[3], ab=R[1] + R[2])
        d["passes"] = 8 if "32x32x16" in mn else 4
    elif mn.startswith("v_cmp"):
        d.update(kind="valu", wr=R[0], rd=flat(R[1:]))
    elif mn in ("v_readfirstlane_b32", "v_readlane_b32"):
        d.update(kind="valu", wr=R[0], rd=flat(R[1:]))
    elif mn.startswith("v_permlane32_swap") or mn.startswith("v_permlane16_swap"):
        d.update(kind="valu", wr=R[0] + R[1], rd=R[0] + R[1])
    elif mn.startswith("v_"):
        rd = flat(R[1:])
        if mn.startswith("v_fmac") or mn.startswith("v_dot2c"): rd += R[0]
        wr = list(R[0])
        if "_co_" in mn: wr += R[1]
        d.update(kind="trans" if mn.replace("_e32", "").replace("_e64", "") in TRANS else "valu", wr=wr, rd=rd)
    elif mn.startswith("buffer_") or mn.startswith("global_"):
        d["kind"] = "vmem"
        if mn in ("buffer_wbl2", "buffer_inv"):
            pass
        elif "lds" in mods or "_lds_" in mn:
            d.update(rd=flat(R) + [("m", 0)], lds=True)
        elif "load" in mn:
            d.update(wr=R[0], rd=flat(R[1:]))
        elif "store" in mn:
            d.update(rd=flat(R))
            d["sdata"] = R[0] if mn.startswith("buffer_") else R[1]
        elif "atomic" in mn:
            d.update(rd=flat(R))
            if "sc0" in mods: d["wr"] = R[0]
    elif mn.startswith("ds_"):
        d["kind"] = "ds"
        if "read" in mn or "bpermute" in mn or "swizzle" in mn:
            d.update(wr=R[0], rd=flat(R[1:]))
        else:
            d.update(rd=flat(R))
    elif mn.startswith("s_atomic"):
        d.update(kind="smem", rd=flat(R))
    elif mn.startswith("s_load") or mn in ("s_memtime", "s_memrealtime"):
        d.update(kind="smem", wr=R[0], rd=flat(R[1:]))
    elif mn in ("s_nop", "s_waitcnt", "s_barrier", "s_endpgm", "s_setprio", "s_sleep") or mn.startswith("s_cbranch") or mn == "s_branch":
        d["kind"] = "other"
        if mn == "s_nop": d["nop"] = int(ops[0]) + 1
    elif mn.startswith("s_cmp") or mn.startswith("s_bitcmp"):
        d.update(kind="salu", rd=flat(R))
    elif mn.startswith("s_"):
        wr = list(R[0])
        if "saveexec" in mn: wr += [("e", 0)]
        d.update(kind="salu", wr=wr, rd=flat(R[1:]))
    else:
        raise ValueError("cannot parse " + txt)
    return d

def need(p, c):
    n = 0
    pw, cr, cw = set(p["wr"]), set(c["rd"]), set(c["wr"])
    pk, ck = p["kind"], c["kind"]
    isv = lambda k: k in ("valu", "trans")
    if isv(pk):
        vw = {r for r in pw if r[0] in "va"}
        sw = {r for r in pw if r[0] == "s"}
        if ck == "mfma" and vw & cr: n = max(n, 2)
        if c["mn"] in ("v_readfirstlane_b32", "v_readlane_b32") and vw & cr: n = max(n, 1)
        if c["mn"].startswith("v_permlane") and vw & cr: n = max(n, 2)
        if pk == "trans" and isv(ck) and vw & cr: n = max(n, 1)
        if pk == "trans" and ck in ("vmem", "ds") and vw & cr: n = max(n, 1)
        if sw & cr:
            if ck == "vmem": n = max(n, 5)
            elif isv(ck): n = max(n, 4 if c["mn"] in ("v_readlane_b32", "v_writelane_b32") else 2)
            elif ck in ("salu", "smem"): n = max(n, 1)
        if c["mn"].startswith("v_cndmask") and ("s", 106) in sw: n = max(n, 2)
        if "dpp" in " ".join(c["mods"]) or any(m.startswith(("row_", "quad_perm")) for m in c["mods"]):
            if vw & cr: n = max(n, 2)
    if pk == "salu":
        if ("m", 0) in pw and c.get("lds"): n = max(n, 1)
    if pk == "mfma":
        ps = p["passes"]
        big = {4: 8, 8: 12}[ps]
        if ck == "mfma":
            if pw & set(c["ab"]): n = max(n, big)
            sc = set(c["srcc"])
            if pw & sc and not (c["srcc"] == p["wr"] and c["passes"] == ps): n = max(n, {4: 6, 8: 10}[ps])
            if pw & cw and not (pw & sc): n = max(n, {4: 6, 8: 10}[ps])
        elif isv(ck):
            if pw & (cr | cw): n = max(n, big)
            if set(p["srcc"]) & cw: n = max(n, {4: 3, 8: 7}[ps])
        elif ck in ("vmem", "ds"):
            if pw & (cr | cw): n = max(n, big)
    if pk == "vmem" and p["sdata"] and len(p["sdata"]) >= 3:
        if set(p["sdata"]) & cw: n = max(n, 2)
    if pk == "ds" and "write" in p["mn"] and isv(ck):
        pass
    return n

class Prog:
    def __init__(self):
        self.ins = []
    def add(self, x, tag=None, opt=None):
        if isinstance(x, I):
            if opt and not x.opt: x.opt = opt
            self.ins.append(x)
        elif isinstance(x, (list, tuple)):
            for y in x: self.add(y, tag, opt)
        else:
            for line in x.split("\n"):
                if line.strip(): self.ins.append(I(line.strip(), tag, opt))
    __call__ = add

    def finalize(self):
        out = []
        vm, lg = [], []
        for x in self.ins:
            t = x.txt
            if t.startswith("WAITVM") or t.startswith("WAITLG"):
                isvm = t.startswith("WAITVM")
                q = vm if isvm else lg
                tags = t.split()[1:]
                idx = -1
                for k, (tg, opt) in enumerate(q):
                    if tg in tags: idx = k
                assert idx >= 0, "no op with tag %s" % tags
                n = sum(1 for (tg, opt) in q[idx + 1:] if (not opt) or opt == x.opt)
                n = min(n, 63 if isvm else 15)
                out.append(I("s_waitcnt %s(%d)" % ("vmcnt" if isvm else "lgkmcnt", n), opt=x.opt))
                continue
            p = parse(t)
            if p:
                if p["kind"] == "vmem": vm.append((x.tag, x.opt))
                if p["kind"] == "ds": lg.append((x.tag, x.opt))
            out.append(x)
        res = []
        hist = []
        for x in out:
            p = parse(x.txt)
            if p is None:
                res.append(x); continue
            req = 0
            dist = 0
            for (q, qopt) in reversed(hist):
                n = need(q, p)
                if n > dist: req = max(req, n - dist)
                if (not qopt) or qopt == x.opt:
                    dist += q.get("nop", 1)
                if dist >= 20: break
            while req > 0:
                k = min(req, 16)
                nop = I("s_nop %d" % (k - 1), opt=x.opt)
                res.append(nop); hist.append((parse(nop.txt), x.opt)); req -= k
            res.append(x); hist.append((p, x.opt))
            if len(hist) > 64: hist = hist[-64:]
        return "\n".join(("" if r.txt.endswith(":") else "    ") + r.txt for r in res) + "\n"

def interleave(main, fill, start=0, end=None):
    if end is None: end = len(main)
    n = end - start
    out = []
    k = 0
    for i, m in enumerate(main):
        out.append(m)
        if start <= i < end:
            tgt = (i - start + 1) * len(fill) // n
            while k < tgt:
                out.append(fill[k]); k += 1
    while k < len(fill):
        out.append(fill[k]); k += 1
    return out
```

```python
import sys, json
from asmlib import *

NAME = "standalone__gqa_block_cached__near_ridge"
HDR = open("cdna_kernels/%s.s.ref" % NAME).read().split("; Override launch")[0]

DEF = dict(mode="split", part="bf16", depth=20480, ring=32768, stamps=0,
           fl_wq="", fl_x="", fl_k="", fl_v="", fl_wo="", order1="W0 W1 X0 W2 X1 W3 W4")

sW, sXCD, sI, sHQ, sBP = 3, 4, 5, 6, 7
sWB = 8
sWQO, sXO, sVO, sWOO, sKO = 9, 10, 11, 12, 13
sT0, sT1 = 14, 15
SRD = dict(x=32, k=36, v=40, wq=44, wo=48, out=52, ws=56, dbg=60)
PTR = dict(x=16, k=18, v=20, wq=22, wo=24, out=26, dbg=28, ws=30)
SIZE = dict(x=655360, k=6291456, v=6291456, wq=7864320, wo=7864320, out=655360, dbg=256, ws=268435456)
sSOFF = [64, 65, 66, 67]
sSTAMP = 70
vLANE = 1
vDWQ = [2, 3, 4, 5]
vDKV = [6, 7, 8, 9]
vDX = [10, 11, 12, 13, 14]
vDO = [15, 16, 17, 18, 19]
vRW = [20, 21, 22, 23]
vRX = [24, 25]
vRO = 26
vL16 = 27
vDK = 28
vT = [29, 30, 31]
vS = 32
vWF = 64
vTA = 96
vTB = 160
vU = 96
aK = 0; aX = 96; aV = 0; aO = 176
WS_P = 0
WS_PART = 1 << 20
WS_STAMP = 32 << 20

def srd(n): return "s[%d:%d]" % (SRD[n], SRD[n] + 3)
def vr(b, n=4): return "v[%d:%d]" % (b, b + n - 1)
def ar(b, n=4): return "a[%d:%d]" % (b, b + n - 1)
MF = "v_mfma_f32_32x32x16_bf16"

class Gen:
    def __init__(self, **kw):
        self.c = dict(DEF); self.c.update(kw)
        self.nst = 0
        self.soffi = 0

    def stamp(self, P):
        if self.c["stamps"]:
            r = sSTAMP + 2 * self.nst; self.nst += 1
            assert r + 1 <= 101
            P("s_memtime s[%d:%d]" % (r, r + 1))

    def dump_stamps(self, P, kidx):
        if not self.c["stamps"]: return
        P("s_waitcnt lgkmcnt(0)")
        P("s_lshl_b32 s%d, s2, 2" % sT0)
        P("s_add_u32 s%d, s%d, s%d" % (sT0, sT0, sW))
        P("s_lshl_b32 s%d, s%d, 8" % (sT0, sT0))
        P("s_add_u32 s%d, s%d, %d" % (sT0, sT0, WS_STAMP + (kidx << 20)))
        P("s_mov_b64 exec, 1")
        P("v_mov_b32 v2, 0")
        for i in range(self.nst):
            P("v_mov_b32 v4, s%d\nv_mov_b32 v5, s%d" % (sSTAMP + 2 * i, sSTAMP + 2 * i + 1))
            P("buffer_store_dwordx2 v[4:5], v2, %s, s%d offen offset:%d" % (srd("ws"), sT0, 8 * i))
            P("s_nop 1")
        P("s_memrealtime s[%d:%d]\ns_waitcnt lgkmcnt(0)" % (sSTAMP, sSTAMP + 1))
        P("v_mov_b32 v4, s%d\nv_mov_b32 v5, s%d" % (sSTAMP, sSTAMP + 1))
        P("buffer_store_dwordx2 v[4:5], v2, %s, s%d offen offset:248" % (srd("ws"), sT0))
        P("s_nop 1")
        P("v_mov_b32 v4, s68\nv_mov_b32 v5, s69")
        P("buffer_store_dwordx2 v[4:5], v2, %s, s%d offen offset:240" % (srd("ws"), sT0))

    def prologue(self, P, lend, ph1, ph2):
        self.nst = 0
        if self.c["stamps"]: P("s_memrealtime s[68:69]")
        self.stamp(P)
        P("s_cmp_ge_u32 s2, 256\ns_cbranch_scc1 %s" % lend)
        P("s_load_dwordx16 s[16:31], s[0:1], 0")
        P("v_lshrrev_b32 v2, 6, v0")
        P("v_and_b32 v%d, 63, v0" % vLANE)
        P("v_readfirstlane_b32 s%d, v2" % sW)
        P("s_and_b32 s%d, s2, 7" % sXCD)
        P("s_lshr_b32 s%d, s2, 3" % sI)
        P("s_and_b32 s%d, s%d, 3" % (sHQ, sI))
        P("s_lshr_b32 s%d, s%d, 2" % (sBP, sI))
        P("s_lshl_b32 s%d, s%d, 15\ns_add_u32 s%d, s%d, 32768" % (sWB, sW, sWB, sWB))
        t0, t1, t2 = vT
        L = vLANE
        P("v_lshlrev_b32 v%d, 4, v%d" % (vL16, L))
        P("v_lshrrev_b32 v%d, 3, v%d" % (t0, L))
        P("v_lshrrev_b32 v%d, 4, v%d" % (t1, L))
        P("v_xor_b32 v%d, v%d, v%d" % (t1, t1, L))
        P("v_and_b32 v%d, 7, v%d" % (t1, t1))
        P("v_lshlrev_b32 v%d, 4, v%d" % (t1, t1))
        P("v_xor_b32 v%d, 64, v%d" % (t2, t1))
        tabs = []
        if ph1: tabs.append((vDWQ, 12288))
        tabs.append((vDKV, 384))
        for regs, pitch in tabs:
            P("v_mul_u32_u24 v%d, %d, v%d" % (regs[3], pitch, t0))
            P("v_add_u32 v%d, v%d, v%d" % (regs[0], regs[3], t1))
            P("v_add_u32 v%d, v%d, v%d" % (regs[1], regs[3], t2))
            P("v_add_u32 v%d, %d, v%d" % (regs[2], 2 * (8 * pitch - 1024), regs[0]))
            P("v_add_u32 v%d, %d, v%d" % (regs[3], 3 * (8 * pitch - 1024), regs[1]))
            P("v_add_u32 v%d, %d, v%d" % (regs[1], 8 * pitch - 1024, regs[1]))
        if ph1:
            P("s_and_b32 s%d, s%d, 1\ns_lshl_b32 s%d, s%d, 6" % (sT0, sW, sT0, sT0))
            P("v_xor_b32 v%d, s%d, v%d" % (vDK, sT0, vDKV[0]))
            P("s_lshl_b32 s%d, s%d, 2\ns_add_u32 s%d, s%d, s%d" % (sT0, sXCD, sT0, sT0, sHQ))
            P("s_lshl_b32 s%d, s%d, 6\ns_add_u32 s%d, s%d, s%d" % (sT1, sBP, sT1, sT1, sT0))
            P("s_mul_i32 s%d, s%d, 12288" % (sKO, sT1))
            P("s_mul_i32 s%d, s%d, 3072\ns_add_u32 s%d, s%d, s%d" % (sT1, sW, sKO, sKO, sT1))
            P("s_mul_i32 s%d, s%d, 384" % (sWQO, sT0))
            P("s_mul_i32 s%d, s%d, %d\ns_add_u32 s%d, s%d, s%d" % (sT1, sW, 160 * 12288, sWQO, sWQO, sT1))
            P("s_mul_i32 s%d, s%d, %d" % (sXO, sBP, 64 * 1280))
            P("s_mul_i32 s%d, s%d, 320\ns_add_u32 s%d, s%d, s%d" % (sT1, sW, sXO, sXO, sT1))
        if ph2:
            P("s_lshl_b32 s%d, s%d, 2\ns_add_u32 s%d, s%d, s%d" % (sT0, sXCD, sT0, sT0, sW))
            P("s_lshl_b32 s%d, s%d, 6\ns_add_u32 s%d, s%d, s%d" % (sT1, sBP, sT1, sT1, sT0))
            P("s_mul_i32 s%d, s%d, 12288" % (sVO, sT1))
            P("s_mul_i32 s%d, s%d, %d" % (sWOO, sT0, 192 * 1280))
            P("s_mul_i32 s%d, s%d, 320\ns_add_u32 s%d, s%d, s%d" % (sT1, sHQ, sWOO, sWOO, sT1))
        P("s_waitcnt lgkmcnt(0)")
        for n in SRD:
            b = SRD[n]
            P("s_mov_b32 s%d, s%d\ns_mov_b32 s%d, s%d\ns_mov_b32 s%d, %d\ns_mov_b32 s%d, 0x20000" %
              (b, PTR[n], b + 1, PTR[n] + 1, b + 2, SIZE[n], b + 3))
        self.stamp(P)

    def prologue2(self, P, ph1, ph2):
        t0, t1, t2 = vT
        L = vLANE
        for j in range(5):
            P("v_add_u32 v%d, %d, v%d" % (t0, 64 * j, L))
            P("v_mul_u32_u24 v%d, 3277, v%d" % (t1, t0))
            P("v_lshrrev_b32 v%d, 16, v%d" % (t1, t1))
            P("v_mul_u32_u24 v%d, 20, v%d" % (t2, t1))
            P("v_sub_u32 v%d, v%d, v%d" % (t0, t0, t2))
            imm = 1024 * (j % 4)
            P("v_mul_u32_u24 v%d, 1280, v%d" % (t2, t1))
            if imm: P("v_subrev_u32 v%d, %d, v%d" % (t2, imm, t2))
            if ph2:
                P("v_lshl_add_u32 v%d, v%d, 4, v%d" % (vDO[j], t0, t2))
            if ph1:
                P("v_lshrrev_b32 v%d, 2, v%d" % (t1, t1))
                P("v_and_b32 v%d, 3, v%d" % (t1, t1))
                P("v_xor_b32 v%d, v%d, v%d" % (t0, t0, t1))
                P("v_lshl_add_u32 v%d, v%d, 4, v%d" % (vDX[j], t0, t2))
        P("v_and_b32 v%d, 0x13, v%d" % (t0, L))
        P("v_and_b32 v%d, 4, v%d" % (t1, L))
        P("v_lshl_or_b32 v%d, v%d, 1, v%d" % (t0, t1, t0))
        P("v_and_b32 v%d, 8, v%d" % (t1, L))
        P("v_lshrrev_b32 v%d, 1, v%d" % (t1, t1))
        P("v_or_b32 v%d, v%d, v%d" % (t0, t0, t1))
        P("v_lshrrev_b32 v%d, 1, v%d" % (t1, t0))
        P("v_and_b32 v%d, 7, v%d" % (t1, t1))
        P("v_lshrrev_b32 v%d, 5, v%d" % (t2, L))
        P("v_xor_b32 v%d, v%d, v%d" % (t1, t1, t2))
        P("v_lshlrev_b32 v%d, 4, v%d" % (t1, t1))
        P("v_lshl_add_u32 v%d, v%d, 7, v%d" % (vRW[0], t0, t1))
        for jj in range(1, 4):
            P("v_xor_b32 v%d, %d, v%d" % (vRW[jj], 32 * jj, vRW[0]))
        if ph1:
            P("v_and_b32 v%d, 31, v%d" % (t0, L))
            P("v_lshrrev_b32 v%d, 2, v%d" % (t1, t0))
            P("v_and_b32 v%d, 3, v%d" % (t1, t1))
            P("v_xor_b32 v%d, v%d, v%d" % (t1, t1, t2))
            P("v_lshlrev_b32 v%d, 4, v%d" % (t1, t1))
            P("v_mul_u32_u24 v%d, 320, v%d" % (t0, t0))
            P("v_add3_u32 v%d, v%d, v%d, s%d" % (vRX[0], t0, t1, sWB))
            P("v_xor_b32 v%d, 32, v%d" % (vRX[1], vRX[0]))
        if ph2:
            P("v_lshrrev_b32 v%d, 2, v%d" % (t0, L))
            P("v_and_b32 v%d, 3, v%d" % (t0, t0))
            P("v_lshl_add_u32 v%d, v%d, 3, v%d" % (t0, t2, t0))
            P("v_mul_u32_u24 v%d, 320, v%d" % (t0, t0))
            P("v_and_b32 v%d, 1, v%d" % (t1, L))
            P("v_lshlrev_b32 v%d, 4, v%d" % (t1, t1))
            P("v_and_b32 v%d, 2, v%d" % (t2, L))
            P("v_lshl_or_b32 v%d, v%d, 2, v%d" % (t1, t2, t1))
            P("v_and_b32 v%d, 16, v%d" % (t2, L))
            P("v_lshl_or_b32 v%d, v%d, 1, v%d" % (t1, t2, t1))
            P("v_add3_u32 v%d, v%d, v%d, s%d" % (vRO, t0, t1, sWB))

    def add_wb(self, P):
        for r in vRW: P("v_add_u32 v%d, s%d, v%d" % (r, sWB, r))

    def nsoff(self):
        s = sSOFF[self.soffi % len(sSOFF)]; self.soffi += 1
        return s

    def mk_chunks(self, names):
        c = self.c
        out = []
        wcount = [0]
        ocount = [0]
        def sub128(name, tensor, regs, sbase, goff, dst, fl):
            def dma(off):
                s = self.nsoff()
                atoms = []
                for j in range(4):
                    a = []
                    if j == 0:
                        a.append(I("s_add_u32 m0, s%d, %d" % (sWB, off)))
                        a.append(I("s_add_u32 s%d, s%d, %d" % (s, sbase, goff)))
                    a.append(I("buffer_load_dwordx4 v%d, %s, s%d offen offset:%d %s lds" % (regs[j], srd(tensor), s, 1024 * j, fl), tag=name))
                    atoms.append(a)
                return atoms
            def reads(off):
                return [I("ds_read_b128 %s, v%d offset:%d" % (dst(jj), vRW[jj], off), tag=name) for jj in range(4)]
            return dict(name=name, size=4096, dma=dma, reads=reads)
        def dma320(name, tensor, regs, sbase, goff, fl, off):
            s = self.nsoff()
            atoms = []
            for j in range(5):
                a = []
                if j == 0:
                    a.append(I("s_add_u32 m0, s%d, %d" % (sWB, off)))
                    a.append(I("s_add_u32 s%d, s%d, %d" % (s, sbase, goff)))
                if j == 4:
                    a.append(I("s_add_u32 m0, s%d, %d" % (sWB, off + 4096)))
                a.append(I("buffer_load_dwordx4 v%d, %s, s%d offen offset:%d %s lds" % (regs[j], srd(tensor), s, 1024 * (j % 4), fl), tag=name))
                atoms.append(a)
            return atoms
        for nm in names:
            k, idx = nm[0], int(nm[1:])
            if k == "W":
                for a in range(3):
                    buf = vWF + 16 * (wcount[0] % 2); wcount[0] += 1
                    ch = sub128("W%d%d" % (idx, a), "wq", vDWQ, sWQO, idx * 32 * 12288 + 128 * a,
                                (lambda buf: lambda jj: vr(buf + 4 * jj))(buf), c["fl_wq"])
                    ch.update(kind="W", t=idx, a=a, buf=buf); out.append(ch)
            elif k == "V":
                for a in range(3):
                    base = aV + 48 * idx + 16 * a
                    ch = sub128("V%d%d" % (idx, a), "v", vDKV, sVO, idx * 32 * 12288 + 128 * a,
                                (lambda base: lambda jj: ar(base + 4 * jj))(base), c["fl_v"])
                    ch.update(kind="V"); out.append(ch)
            elif k == "X":
                def dma(off, idx=idx, nm=nm):
                    return (dma320(nm, "x", vDX, sXO, idx * 32 * 1280, c["fl_x"], off) +
                            dma320(nm, "x", vDX, sXO, idx * 32 * 1280 + 16 * 1280, c["fl_x"], off + 5120))
                def reads(off, idx=idx, nm=nm):
                    return [I("ds_read_b128 %s, v%d offset:%d" % (ar(aX + 40 * idx + 8 * t + 4 * m), vRX[m], off + 64 * t), tag=nm)
                            for t in range(5) for m in range(2)]
                out.append(dict(name=nm, size=10240, dma=dma, reads=reads, kind="X", b=idx))
            elif k == "O":
                buf = aO + 20 * (ocount[0] % 2); ocount[0] += 1
                def dma(off, idx=idx, nm=nm):
                    return dma320(nm, "wo", vDO, sWOO, idx * 16 * 1280, c["fl_wo"], off)
                def reads(off, nm=nm, buf=buf):
                    return [I("ds_read_b64_tr_b16 %s, v%d offset:%d" % (ar(buf + 4 * nt + 2 * u, 2), vRO, off + 4 * u * 320 + 64 * nt), tag=nm)
                            for nt in range(5) for u in range(2)]
                out.append(dict(name=nm, size=5120, dma=dma, reads=reads, kind="O", ks=idx, buf=buf))
        ring = c["ring"]
        pos = 0
        for i, ch in enumerate(out):
            if pos + ch["size"] > ring: pos = 0
            ch["off"] = pos; pos += ch["size"]
            dep = -1
            for k2 in range(i):
                o = out[k2]
                if o["off"] < ch["off"] + ch["size"] and ch["off"] < o["off"] + o["size"]: dep = k2
            e = dep
            s = i
            acc = 0
            while s > 0 and acc + out[s]["size"] <= c["depth"]:
                acc += out[s]["size"]; s -= 1
            if s == 0 and acc + out[0]["size"] <= c["depth"]: s = -1
            if s == i: s = i - 1
            ch["issue"] = max(e, s, out[i - 1]["issue"] if i else -1)
            assert ch["issue"] < i
        return out

    def run_steps(self, P, chunks, compute, extra_fill=lambda s: []):
        n = len(chunks)
        P("WAITVM %s" % chunks[0]["name"])
        P(chunks[0]["reads"](chunks[0]["off"]))
        P("WAITLG %s" % chunks[0]["name"])
        for s in range(n):
            comp = compute(s)
            fill = []
            for ch in chunks:
                if ch["issue"] == s: fill += ch["dma"](ch["off"])
            fill += extra_fill(s)
            h = (len(comp) + 1) // 2
            first = interleave(comp[:h], fill) if h else fill
            for a in first: P(a)
            if s + 1 < n:
                nx = chunks[s + 1]
                P("WAITVM %s" % nx["name"])
                rd = [[r] for r in nx["reads"](nx["off"])]
                rest = comp[h:]
                for a in rd[:4]: P(a)
                k = max(1, len(rest) // 2)
                for a in (interleave(rest, rd[4:], 0, k) if rest else rd[4:]): P(a)
                P("WAITLG %s" % nx["name"])
            else:
                for a in comp[h:]: P(a)

    def k_load(self, P):
        for b in range(2):
            for a in range(3):
                s = self.nsoff()
                P("s_lshl_b32 s%d, s%d, 10\ns_add_u32 m0, s%d, %d" % (s, sW, s, (3 * b + a) * 4096))
                P("s_add_u32 s%d, s%d, %d" % (s, sKO, b * 32 * 12288 + 128 * a))
                P(I("buffer_load_dwordx4 v%d, %s, s%d offen %s lds" % (vDK, srd("k"), s, self.c["fl_k"]), tag="K"))

    def k_read(self, P):
        P("WAITVM K")
        P("s_barrier")
        for a in range(3):
            for b in range(2):
                for jj in range(4):
                    P(I("ds_read_b128 %s, v%d offset:%d" % (ar(aK + 48 * b + 16 * a + 4 * jj), vRW[jj], (3 * b + a) * 4096), tag="KF"))
        self.add_wb(P)

    def ph1_compute(self, chunks):
        comp = {}
        pend_cvt = None
        cvt_done = []
        xs = set()
        sdone = set()
        sfirst = [True, True]
        def cvts(t):
            ta = vTA + 32 * (t % 2)
            return [[I("v_cvt_pk_bf16_f32 v%d, v%d, v%d" % (vTB + 16 * t + i, ta + 2 * i, ta + 2 * i + 1))] for i in range(16)]
        def smf():
            r = []
            for t in cvt_done:
                for b in sorted(xs):
                    if (t, b) in sdone: continue
                    sdone.add((t, b))
                    for m in range(2):
                        cs = "0" if sfirst[b] else vr(vS + 16 * b, 16)
                        sfirst[b] = False
                        r.append([I("%s %s, %s, %s, %s" % (MF, vr(vS + 16 * b, 16), vr(vTB + 16 * t + 8 * b + 4 * m), ar(aX + 40 * b + 8 * t + 4 * m), cs))])
            return r
        last = None
        for s, ch in enumerate(chunks):
            if ch["kind"] not in "WX": break
            last = s
            atoms = []
            if ch["kind"] == "X": xs.add(ch["b"])
            sm = smf()
            if ch["kind"] == "W":
                t, a = ch["t"], ch["a"]
                ta = vTA + 32 * (t % 2)
                for jj in range(4):
                    for b in range(2):
                        cs = "0" if (a == 0 and jj == 0) else vr(ta + 16 * b, 16)
                        atoms.append([I("%s %s, %s, %s, %s" % (MF, vr(ta + 16 * b, 16), vr(ch["buf"] + 4 * jj), ar(aK + 48 * b + 16 * a + 4 * jj), cs))])
            atoms = atoms + sm
            if pend_cvt is not None:
                cv = cvts(pend_cvt)
                if len(atoms) >= 6: atoms = interleave(atoms, cv, 2, len(atoms))
                else: atoms = atoms + cv
                cvt_done.append(pend_cvt); pend_cvt = None
            if ch["kind"] == "W" and ch["a"] == 2: pend_cvt = ch["t"]
            comp[s] = atoms
        tail = smf()
        if pend_cvt is not None:
            tail += cvts(pend_cvt); cvt_done.append(pend_cvt)
        tail += smf()
        assert len(sdone) == 10
        return comp, tail, last

    def softmax(self, P):
        t0, t1, t2 = vT
        P("s_lshl_b32 s%d, s%d, 13" % (sT0, sW))
        P("v_add_u32 v%d, s%d, v%d" % (t0, sT0, vL16))
        for b in range(2):
            for k in range(4):
                P(I("ds_write_b128 v%d, %s offset:%d" % (t0, vr(vS + 16 * b + 4 * k), (4 * b + k) * 1024), tag="SW"))
        P("s_and_b32 s%d, s%d, 1\ns_lshl_b32 s%d, s%d, 12" % (sT1, sW, sT0, sT1))
        P("v_add_u32 v%d, s%d, v%d" % (t1, sT0, vL16))
        P("WAITLG SW")
        P("s_barrier")
        R = 96
        for w in range(4):
            for k in range(4):
                P(I("ds_read_b128 %s, v%d offset:%d" % (vr(R + 16 * w + 4 * k), t1, w * 8192 + k * 1024), tag="SR%d" % w))
        P("WAITLG SR1")
        for i in range(0, 16, 2):
            P("v_pk_add_f32 v[%d:%d], v[%d:%d], v[%d:%d]" % (R + i, R + i + 1, R + i, R + i + 1, R + 16 + i, R + 17 + i))
        P("WAITLG SR3")
        for i in range(0, 16, 2):
            P("v_pk_add_f32 v[%d:%d], v[%d:%d], v[%d:%d]" % (R + 32 + i, R + 33 + i, R + 32 + i, R + 33 + i, R + 48 + i, R + 49 + i))
        for i in range(0, 16, 2):
            P("v_pk_add_f32 v[%d:%d], v[%d:%d], v[%d:%d]" % (R + i, R + i + 1, R + i, R + i + 1, R + 32 + i, R + 33 + i))
        m, m2 = R + 16, R + 17
        P("v_max3_f32 v%d, v%d, v%d, v%d" % (m, R, R + 1, R + 2))
        P("v_max3_f32 v%d, v%d, v%d, v%d" % (m2, R + 3, R + 4, R + 5))
        for i in range(6, 14, 4):
            P("v_max3_f32 v%d, v%d, v%d, v%d" % (m, m, R + i, R + i + 1))
            P("v_max3_f32 v%d, v%d, v%d, v%d" % (m2, m2, R + i + 2, R + i + 3))
        P("v_max3_f32 v%d, v%d, v%d, v%d" % (m, m, R + 14, R + 15))
        P("v_max_f32 v%d, v%d, v%d" % (m, m, m2))
        P("v_mov_b32 v%d, v%d" % (m2, m))
        P("v_permlane32_swap_b32 v%d, v%d" % (m, m2))
        P("v_max_f32 v%d, v%d, v%d" % (m, m, m2))
        import math, struct
        cval = struct.unpack("<I", struct.pack("<f", 192 ** -0.5 * math.log2(math.e)))[0]
        P("s_mov_b32 s%d, 0x%x" % (sT0, cval))
        P("v_mul_f32 v%d, s%d, v%d" % (m, sT0, m))
        for i in range(16):
            P("v_fma_f32 v%d, v%d, s%d, -v%d" % (R + i, R + i, sT0, m))
        for i in range(16):
            P("v_exp_f32 v%d, v%d" % (R + i, R + i))
        Q = R + 32
        for i in range(0, 8, 2):
            P("v_pk_add_f32 v[%d:%d], v[%d:%d], v[%d:%d]" % (Q + i, Q + i + 1, R + i, R + i + 1, R + 8 + i, R + 9 + i))
        P("v_pk_add_f32 v[%d:%d], v[%d:%d], v[%d:%d]" % (Q, Q + 1, Q, Q + 1, Q + 2, Q + 3))
        P("v_pk_add_f32 v[%d:%d], v[%d:%d], v[%d:%d]" % (Q + 4, Q + 5, Q + 4, Q + 5, Q + 6, Q + 7))
        P("v_pk_add_f32 v[%d:%d], v[%d:%d], v[%d:%d]" % (Q, Q + 1, Q, Q + 1, Q + 4, Q + 5))
        P("v_add_f32 v%d, v%d, v%d" % (m, Q, Q + 1))
        P("v_mov_b32 v%d, v%d" % (m2, m))
        P("v_permlane32_swap_b32 v%d, v%d" % (m, m2))
        P("v_add_f32 v%d, v%d, v%d" % (m, m, m2))
        P("v_rcp_f32 v%d, v%d" % (m, m))
        for i in range(16):
            P("v_mul_f32 v%d, v%d, v%d" % (R + i, R + i, m))
        PB = 64
        for i in range(8):
            P("v_cvt_pk_bf16_f32 v%d, v%d, v%d" % (PB + i, R + 2 * i, R + 2 * i + 1))
        P("s_lshl_b32 s%d, s%d, 1\ns_add_u32 s%d, s%d, s%d" % (sT0, sBP, sT0, sT0, sT1))
        P("s_lshl_b32 s%d, s%d, 5" % (sT0, sT0))
        P("s_lshl_b32 s%d, s%d, 2\ns_add_u32 s%d, s%d, s%d\ns_add_u32 s%d, s%d, s%d" % (sT1, sXCD, sT0, sT0, sT1, sT0, sT0, sHQ))
        P("s_lshl_b32 s%d, s%d, 11" % (sT0, sT0))
        fl = "sc1" if self.c["mode"] != "split" else ""
        P("s_cmp_lt_u32 s%d, 2\ns_cbranch_scc1 L_pst0" % sW)
        for i in range(4): P("v_mov_b32 v%d, v%d" % (PB + i, PB + 4 + i), opt="pst")
        P("s_add_u32 s%d, s%d, 1024" % (sT0, sT0), opt="pst")
        P("L_pst0:")
        P(I("buffer_store_dwordx4 %s, v%d, %s, s%d offen offset:%d %s" % (vr(PB), vL16, srd("ws"), sT0, WS_P, fl), tag="PST"))

    def ph2_compute(self, ch, first):
        ks = ch["ks"]
        atoms = []
        for nt in range(5):
            for b in range(2):
                u = vU + 16 * (5 * b + nt)
                cs = "0" if first else vr(u, 16)
                atoms.append([I("%s %s, %s, %s, %s" % (MF, vr(u, 16), ar(aV + 48 * b + 4 * ks), ar(ch["buf"] + 4 * nt), cs))])
        return atoms

    def p_load(self):
        atoms = []
        fl = "sc1" if self.c["mode"] != "split" else ""
        for b in range(2):
            s = self.nsoff()
            a = [I("s_lshl_b32 s%d, s%d, 11" % (s, sW)),
                 I("s_add_u32 m0, s%d, %d" % (s, b * 8192)),
                 I("s_lshl_b32 s%d, s%d, 6" % (sT0, sBP)),
                 I("s_lshl_b32 s%d, s%d, 2" % (sT1, sXCD)),
                 I("s_add_u32 s%d, s%d, s%d" % (sT0, sT0, sT1)),
                 I("s_add_u32 s%d, s%d, %d" % (sT0, sT0, 32 * b)),
                 I("s_lshl_b32 s%d, s%d, 11" % (sT0, sT0)),
                 I("s_add_u32 s%d, s%d, s%d" % (s, s, sT0)),
                 I("buffer_load_dwordx4 v%d, %s, s%d offen offset:0 %s lds" % (vL16, srd("ws"), s, fl), tag="PL")]
            atoms.append(a)
            atoms.append([I("buffer_load_dwordx4 v%d, %s, s%d offen offset:1024 %s lds" % (vL16, srd("ws"), s, fl), tag="PL")])
        return atoms

    def ph2_final(self, P):
        t0, t1, t2 = vT
        c = self.c
        P("v_add_u32 v%d, s%d, v%d" % (t0, sWB, vL16))
        for T in range(10):
            u = vU + 16 * T
            for i in range(8):
                P("v_cvt_pk_bf16_f32 v%d, v%d, v%d" % (u + i, u + 2 * i, u + 2 * i + 1))
            for m in range(2):
                P(I("ds_write_b128 v%d, %s offset:%d" % (t0, vr(u + 4 * m), (2 * T + m) * 1024), tag="UW"))
        P("s_lshl_b32 s%d, s%d, 11\ns_add_u32 s%d, s%d, 32768" % (sT0, sW, sT0, sT0))
        P("v_add_u32 v%d, s%d, v%d" % (t1, sT0, vL16))
        P("v_add_u32 v%d, 0x10000, v%d" % (t2, t1))
        P("WAITVM PL")
        P("WAITLG UW")
        P("s_barrier")
        self.stamp(P)
        aP, aU, vO = 0, 64, 32
        def uread(z, off):
            for h in range(4):
                for m in range(2):
                    yield I("ds_read_b128 %s, v%d offset:%d" % (ar(aU + 32 * z + 8 * h + 4 * m), (t1, t2)[h // 2], (h % 2) * 32768 + off + m * 1024), tag="UR%d" % z)
        def pread(b):
            for h in range(4):
                for m in range(2):
                    yield I("ds_read_b128 %s, v%d offset:%d" % (ar(aP + 32 * b + 8 * h + 4 * m), vL16, b * 8192 + h * 2048 + m * 1024), tag="PR%d" % b)
        def mf(z, b):
            r = []
            for h in range(4):
                for m in range(2):
                    cs = "0" if (h == 0 and m == 0) else vr(vO + 16 * z, 16)
                    r.append(I("%s %s, %s, %s, %s" % (MF, vr(vO + 16 * z, 16), ar(aU + 32 * z + 8 * h + 4 * m), ar(aP + 32 * b + 8 * h + 4 * m), cs)))
            return r
        for x, y in zip(uread(0, 0), pread(0)): P([x, y])
        for x, y in zip(uread(1, 10240), pread(1)): P([x, y])
        P("WAITLG PR0")
        P(mf(0, 0))
        P("s_cmp_lt_u32 s%d, 2\ns_cbranch_scc1 L_no3a" % sW)
        P("s_cmp_eq_u32 s%d, 3\ns_cbranch_scc1 L_w3a" % sW, opt="w23")
        P(list(uread(2, 4096)), opt="w2")
        P("s_branch L_no3a", opt="w2")
        P("L_w3a:")
        P(list(uread(2, 12288)), opt="w3")
        P("L_no3a:")
        P("WAITLG PR1")
        P(mf(1, 1))
        f32 = c["part"] == "f32"
        tb = 4096 if f32 else 2048
        P("s_lshl_b32 s%d, s%d, 3\ns_add_u32 s%d, s%d, s%d" % (sT0, sI, sT0, sT0, sXCD))
        P("s_mul_i32 s%d, s%d, %d" % (sT0, sT0, 10 * tb))
        P("s_add_u32 s%d, s%d, %d" % (sT0, sT0, WS_PART))
        P("s_mul_i32 s%d, s%d, %d\ns_add_u32 s%d, s%d, s%d" % (sT1, sW, tb, sT0, sT0, sT1))
        fl = "sc1" if c["mode"] == "fused" else ""
        def store(z, soff, opt=None):
            o = vO + 16 * z
            if f32:
                for k in range(4):
                    P(I("buffer_store_dwordx4 %s, v%d, %s, s%d offen offset:%d %s" % (vr(o + 4 * k), vL16, srd("ws"), soff, 1024 * k, fl), tag="OST"), opt=opt)
            else:
                for i in range(8):
                    P("v_cvt_pk_bf16_f32 v%d, v%d, v%d" % (o + i, o + 2 * i, o + 2 * i + 1), opt=opt)
                for m in range(2):
                    P(I("buffer_store_dwordx4 %s, v%d, %s, s%d offen offset:%d %s" % (vr(o + 4 * m), vL16, srd("ws"), soff, 1024 * m, fl), tag="OST"), opt=opt)
        s1, s2 = sSOFF[0], sSOFF[1]
        P("s_add_u32 s%d, s%d, %d" % (s1, sT0, 5 * tb))
        store(0, sT0)
        P("s_cmp_lt_u32 s%d, 2\ns_cbranch_scc1 L_no3b" % sW)
        P("s_waitcnt lgkmcnt(0)", opt="w23b")
        P("s_cmp_eq_u32 s%d, 3\ns_cbranch_scc1 L_w3b" % sW, opt="w23b")
        P(mf(2, 0), opt="w2b")
        P("s_add_u32 s%d, s%d, %d" % (s2, sT0, 2 * tb), opt="w2b")
        P("s_branch L_no3b", opt="w2b")
        P("L_w3b:")
        P(mf(2, 1), opt="w3b")
        P("s_add_u32 s%d, s%d, %d" % (s2, sT0, 6 * tb), opt="w3b")
        P("L_no3b:")
        store(1, s1)
        P("s_cmp_lt_u32 s%d, 2\ns_cbranch_scc1 L_no3c" % sW)
        store(2, s2, opt="w23c")
        P("L_no3c:")

    def reduce(self, P, ld_fl=""):
        c = self.c
        f32 = c["part"] == "f32"
        tb = 4096 if f32 else 2048
        t0, t1, t2 = vT
        u, blk, ln, off = 2, 3, 4, 5
        P("s_mul_i32 s%d, s%d, 160\ns_mul_i32 s%d, s%d, 40\ns_add_u32 s%d, s%d, s%d" % (sT0, sXCD, sT1, sW, sT0, sT0, sT1))
        P("v_add_u32 v%d, s%d, v%d" % (u, sT0, vLANE))
        P("v_lshrrev_b32 v%d, 6, v%d" % (blk, u))
        P("v_and_b32 v%d, 63, v%d" % (ln, u))
        if f32:
            P("v_lshlrev_b32 v%d, 11, v%d" % (off, blk))
            P("v_lshl_add_u32 v%d, v%d, 4, v%d" % (off, ln, off))
        else:
            P("v_lshlrev_b32 v%d, 4, v%d" % (off, u))
        P("s_mul_i32 s%d, s%d, %d\ns_add_u32 s%d, s%d, %d" % (sT0, sI, 80 * tb, sT0, sT0, WS_PART))
        P("s_mov_b32 exec_hi, 0xff")
        D = 32
        for x in range(8):
            if f32:
                P(I("buffer_load_dwordx4 %s, v%d, %s, s%d offen %s" % (vr(D + 8 * x), off, srd("ws"), sT0, ld_fl), tag="R%d" % x))
                P(I("buffer_load_dwordx4 %s, v%d, %s, s%d offen offset:1024 %s" % (vr(D + 8 * x + 4), off, srd("ws"), sT0, ld_fl), tag="R%d" % x))
            else:
                P(I("buffer_load_dwordx4 %s, v%d, %s, s%d offen %s" % (vr(D + 8 * x), off, srd("ws"), sT0, ld_fl), tag="R%d" % x))
            if x < 7: P("s_add_u32 s%d, s%d, %d" % (sT0, sT0, 10 * tb))
        T, b = 6, 7
        P("v_lshrrev_b32 v%d, 1, v%d" % (T, blk))
        P("v_cmp_le_u32 vcc, 5, v%d" % T)
        P("v_cndmask_b32 v%d, 0, 1, vcc" % b)
        P("v_mul_u32_u24 v%d, %d, v%d" % (b, 32 * 1280 - 320, b))
        P("v_lshl_add_u32 v%d, v%d, 5, v%d" % (b, blk, b))
        P("v_and_b32 v%d, 31, v%d" % (T, ln))
        P("v_mul_u32_u24 v%d, 1280, v%d" % (T, T))
        P("v_add_u32 v%d, v%d, v%d" % (b, b, T))
        P("v_lshrrev_b32 v%d, 5, v%d" % (T, ln))
        P("v_lshl_add_u32 v%d, v%d, 4, v%d" % (b, T, b))
        P("s_mul_i32 s%d, s%d, %d\ns_mul_i32 s%d, s%d, 320\ns_add_u32 s%d, s%d, s%d" % (sT0, sBP, 64 * 1280, sT1, sHQ, sT0, sT0, sT1))
        A = 100
        for x in range(8):
            P("WAITVM R%d" % x)
            d = D + 8 * x
            if not f32:
                for i in (3, 2, 1, 0):
                    P("v_and_b32 v%d, 0xffff0000, v%d" % (d + 2 * i + 1, d + i))
                    P("v_lshlrev_b32 v%d, 16, v%d" % (d + 2 * i, d + i))
            if x > 0:
                for i in range(0, 8, 2):
                    P("v_pk_add_f32 v[%d:%d], v[%d:%d], v[%d:%d]" % (D + i, D + i + 1, D + i, D + i + 1, d + i, d + i + 1))
        for i in range(4):
            P("v_cvt_pk_bf16_f32 v%d, v%d, v%d" % (A + i, D + 2 * i, D + 2 * i + 1))
        P("buffer_store_dwordx4 %s, v%d, %s, s%d offen" % (vr(A), b, srd("out"), sT0))

    def kern(self, label, body, vgprs=512):
        P = Prog()
        body(P)
        txt = ".globl %s\n.p2align 8\n.type %s,@function\n%s:\n" % (label, label, label) + P.finalize()
        acc = 256 if vgprs > 256 else vgprs
        kd = (".amdhsa_kernel %s\n  .amdhsa_next_free_vgpr %d\n  .amdhsa_next_free_sgpr 102\n  .amdhsa_accum_offset %d\n"
              "  .amdhsa_group_segment_fixed_size 0\n  .amdhsa_kernarg_size 64\n  .amdhsa_user_sgpr_count 2\n"
              "  .amdhsa_user_sgpr_kernarg_segment_ptr 1\n  .amdhsa_system_sgpr_workgroup_id_x 1\n.end_amdhsa_kernel\n") % (label, vgprs, acc)
        return txt, kd

    def body_k1(self, P):
        self.prologue(P, "L_end1", True, False)
        self.k_load(P)
        chunks = self.mk_chunks(self.c["order1"].split())
        pre = [ch for ch in chunks if ch["issue"] == -1]
        early = [ch for ch in pre if ch["kind"] == "W"]
        for ch in early:
            for a in ch["dma"](ch["off"]): P(a)
        self.prologue2(P, True, False)
        for ch in pre:
            if ch not in early:
                for a in ch["dma"](ch["off"]): P(a)
        self.k_read(P)
        self.stamp(P)
        comp, tail, last = self.ph1_compute(chunks)
        self.run_steps(P, chunks, lambda s: comp[s])
        for a in tail: P(a)
        self.stamp(P)
        P("s_barrier")
        self.softmax(P)
        self.stamp(P)
        self.dump_stamps(P, 0)
        P("L_end1:\ns_endpgm")

    def body_k2(self, P):
        self.prologue(P, "L_end2", False, True)
        chunks = self.mk_chunks(["V0", "V1"] + ["O%d" % k for k in range(12)])
        pre = [ch for ch in chunks if ch["issue"] == -1]
        early = [ch for ch in pre if ch["kind"] == "V"]
        for ch in early:
            for a in ch["dma"](ch["off"]): P(a)
        self.prologue2(P, False, True)
        self.add_wb(P)
        for ch in pre:
            if ch not in early:
                for a in ch["dma"](ch["off"]): P(a)
        def comp(s):
            ch = chunks[s]
            if ch["kind"] == "V": return []
            at = self.ph2_compute(ch, ch["ks"] == 0)
            return at
        self.run_steps(P, chunks, comp, lambda s: self.p_load() if chunks[s]["name"] == "O8" else [])
        self.stamp(P)
        self.ph2_final(P)
        self.stamp(P)
        self.dump_stamps(P, 1)
        P("L_end2:\ns_endpgm")

    def body_k3(self, P):
        self.prologue(P, "L_end3", False, False)
        self.reduce(P)
        self.stamp(P)
        self.dump_stamps(P, 2)
        P("L_end3:\ns_endpgm")

    def build(self):
        c = self.c
        if c["mode"] == "split":
            ks = [("gqa1_kernel", self.body_k1, 512, 163840), ("gqa2_kernel", self.body_k2, 512, 163840), ("gqa3_kernel", self.body_k3, 128, 0)]
        txt = HDR
        for (lab, _, _, lds) in ks:
            txt += "; @launch kernel=%s grid=(256,1,1) block=(256,1,1) lds=%d\n" % (lab, lds)
        txt += '.amdgcn_target "amdgcn-amd-amdhsa--gfx950"\n.text\n'
        kds = ""
        for (lab, body, vg, _) in ks:
            t, kd = self.kern(lab, body, vg)
            txt += t; kds += ".p2align 6\n" + kd
        txt += '.section .rodata,"a"\n' + kds
        return txt

if __name__ == "__main__":
    out = sys.argv[1]
    kw = {}
    for a in sys.argv[2:]:
        k, v = a.split("=", 1)
        kw[k] = int(v) if v.lstrip("-").isdigit() else v
    open(out, "w").write(Gen(**kw).build())
```

```python
import sys, math, struct
from asmlib import *

NAME = "standalone__gqa_block_cached__near_ridge"
HDR = open("cdna_kernels/%s.s.ref" % NAME).read().split("; Override launch")[0]

DEF = dict(mode="h2", stamps=0, spin=20000, depth=2,
           tA="0:-1,1:1,2:4", tB="0:-1,1:1,2:4,3:7", kpos=8, bdelay=0, fillfrac=100)

sW, sXCD, sI, sQ, sBQ = 3, 4, 5, 6, 7
sPB = 8
sWO_, sPO_, sKO = 9, 10, 11
sWM = 12
sT0, sT1, sT2 = 13, 14, 15
sNONCE, sSPIN, sFLO, sJ = 16, 17, 18, 19
SRD = dict(x=32, k=36, v=40, wq=44, wo=48, out=52, ws=56, dbg=60)
PTR = dict(x=16, k=18, v=20, wq=22, wo=24, out=26, dbg=28, ws=30)
SIZE = dict(x=655360, k=6291456, v=6291456, wq=7864320, wo=7864320, out=655360, dbg=256, ws=268435456)
sSOFF = [64, 65, 66, 67]
sSTAMP = 70
vZ = 0
vLANE = 1
vDW = [2, 3, 4, 5, 6, 7]
vDP = [8, 9, 10, 11]
vDK = [12, 13, 14, 15]
vRP = [16, 17, 18, 19]
vRT = [20, 21, 22, 23]
vL16 = 24
vT = [25, 26, 27]
vFL = 28
WS_P = 0
WS_PART = 1 << 20
WS_FLAG = 16 << 20
WS_FLAG2 = WS_FLAG + (1 << 16)
WS_STAMP = 32 << 20
NSLOT = 4
SLOT = 24576
PRIV0 = NSLOT * SLOT
MF = "v_mfma_f32_32x32x16_bf16"

def srd(n): return "s[%d:%d]" % (SRD[n], SRD[n] + 3)
def vr(b, n=4): return "v[%d:%d]" % (b, b + n - 1)
def ar(b, n=4): return "a[%d:%d]" % (b, b + n - 1)
def lines(x): return [I(l) for l in x.split("\n") if l.strip()]

class Gen:
    def __init__(self, **kw):
        self.c = dict(DEF); self.c.update(kw)
        self.nst = 0; self.soffi = 0

    def nsoff(self):
        s = sSOFF[self.soffi % len(sSOFF)]; self.soffi += 1
        return s

    def stamp_i(self):
        if not self.c["stamps"]: return []
        r = sSTAMP + 2 * self.nst; self.nst += 1
        assert r + 1 <= 101
        return [I("%s s[%d:%d]" % ("s_memrealtime" if self.c["stamps"] == 2 else "s_memtime", r, r + 1))]
    def stamp(self, P): P(self.stamp_i())

    def dump_stamps(self, P, kidx):
        if not self.c["stamps"]: return
        P("s_waitcnt lgkmcnt(0)")
        P("s_lshl_b32 s%d, s2, 2" % sT0)
        P("s_add_u32 s%d, s%d, s%d" % (sT0, sT0, sW))
        P("s_lshl_b32 s%d, s%d, 8" % (sT0, sT0))
        P("s_add_u32 s%d, s%d, %d" % (sT0, sT0, WS_STAMP + (kidx << 20)))
        P("s_mov_b64 exec, 1")
        P("v_mov_b32 v2, 0")
        for i in range(16):
            P("v_mov_b32 v4, s%d\nv_mov_b32 v5, s%d" % (sSTAMP + 2 * i, sSTAMP + 2 * i + 1))
            P("buffer_store_dwordx2 v[4:5], v2, %s, s%d offen offset:%d" % (srd("ws"), sT0, 8 * i))
            P("s_nop 1")
        P("s_memrealtime s[%d:%d]\ns_waitcnt lgkmcnt(0)" % (sSTAMP, sSTAMP + 1))
        P("v_mov_b32 v4, s%d\nv_mov_b32 v5, s%d" % (sSTAMP, sSTAMP + 1))
        P("buffer_store_dwordx2 v[4:5], v2, %s, s%d offen offset:248" % (srd("ws"), sT0))
        P("s_nop 1")
        P("v_mov_b32 v4, s68\nv_mov_b32 v5, s69")
        P("buffer_store_dwordx2 v[4:5], v2, %s, s%d offen offset:240" % (srd("ws"), sT0))

    def prologue(self, P, lend):
        self.nst = 0
        if self.c["stamps"]:
            for r in range(sSTAMP, 102, 2): P("s_mov_b64 s[%d:%d], 0" % (r, r + 1))
            P("s_memrealtime s[68:69]")
        self.stamp(P)
        P("s_cmp_ge_u32 s2, 256\ns_cbranch_scc1 %s" % lend)
        P("s_load_dwordx16 s[16:31], s[0:1], 0")
        P("v_lshrrev_b32 v2, 6, v0")
        P("v_and_b32 v%d, 63, v0" % vLANE)
        P("v_readfirstlane_b32 s%d, v2" % sW)
        P("s_and_b32 s%d, s2, 7" % sXCD)
        P("s_lshr_b32 s%d, s2, 3" % sI)
        P("s_and_b32 s%d, s%d, 3" % (sQ, sI))
        P("s_bfe_u32 s%d, s%d, 0x20002" % (sBQ, sI))
        P("s_lshl_b32 s%d, s%d, 14\ns_add_u32 s%d, s%d, %d" % (sPB, sW, sPB, sPB, PRIV0))
        P("v_mov_b32 v%d, 0" % vZ)
        P("v_lshlrev_b32 v%d, 4, v%d" % (vL16, vLANE))

    def srds(self, P):
        P("s_waitcnt lgkmcnt(0)")
        for n in SRD:
            b = SRD[n]
            P("s_mov_b32 s%d, s%d\ns_mov_b32 s%d, s%d\ns_mov_b32 s%d, %d\ns_mov_b32 s%d, 0x20000" %
              (b, PTR[n], b + 1, PTR[n] + 1, b + 2, SIZE[n], b + 3))
        self.stamp(P)

    def tab128(self, P, tabs):
        t0, t1, t2 = vT; L = vLANE
        P("v_lshrrev_b32 v%d, 3, v%d" % (t0, L))
        P("v_lshrrev_b32 v%d, 4, v%d" % (t1, L))
        P("v_xor_b32 v%d, v%d, v%d" % (t1, t1, L))
        P("v_and_b32 v%d, 7, v%d" % (t1, t1))
        P("v_lshlrev_b32 v%d, 4, v%d" % (t1, t1))
        P("v_xor_b32 v%d, 64, v%d" % (t2, t1))
        for regs, pitch in tabs:
            P("v_mul_u32_u24 v%d, %d, v%d" % (regs[3], pitch, t0))
            P("v_add_u32 v%d, v%d, v%d" % (regs[0], regs[3], t1))
            P("v_add_u32 v%d, v%d, v%d" % (regs[1], regs[3], t2))
            P("v_add_u32 v%d, %d, v%d" % (regs[2], 2 * (8 * pitch - 1024), regs[0]))
            P("v_add_u32 v%d, %d, v%d" % (regs[3], 3 * (8 * pitch - 1024), regs[1]))
            P("v_add_u32 v%d, %d, v%d" % (regs[1], 8 * pitch - 1024, regs[1]))

    def tabW(self, P, role):
        t0, t1, t2 = vT; L = vLANE
        if role == "A":
            for j in range(3):
                P("v_add_u32 v%d, %d, v%d" % (t0, 64 * j, L))
                P("v_mul_u32_u24 v%d, 2731, v%d" % (t1, t0))
                P("v_lshrrev_b32 v%d, 16, v%d" % (t1, t1))
                P("v_mul_u32_u24 v%d, 24, v%d" % (t2, t1))
                P("v_sub_u32 v%d, v%d, v%d" % (t0, t0, t2))
                P("v_and_b32 v%d, 2, v%d" % (t2, t1))
                P("v_lshlrev_b32 v%d, 1, v%d" % (t2, t2))
                P("v_xor_b32 v%d, v%d, v%d" % (t0, t0, t2))
                P("v_mul_u32_u24 v%d, 12288, v%d" % (t2, t1))
                P("v_lshl_add_u32 v%d, v%d, 4, v%d" % (t0, t0, t2))
                if j: P("v_subrev_u32 v%d, %d, v%d" % (t0, 1024 * j, t0))
                P("v_mov_b32 v%d, v%d" % (vDW[j], t0))
                P("v_add_u32 v%d, %d, v%d" % (vDW[j + 3], 8 * 12288, t0))
        else:
            for j in range(5):
                P("v_add_u32 v%d, %d, v%d" % (t0, 64 * j, L))
                P("v_mul_u32_u24 v%d, 3277, v%d" % (t1, t0))
                P("v_lshrrev_b32 v%d, 16, v%d" % (t1, t1))
                P("v_mul_u32_u24 v%d, 20, v%d" % (t2, t1))
                P("v_sub_u32 v%d, v%d, v%d" % (t0, t0, t2))
                P("v_mul_u32_u24 v%d, 1280, v%d" % (t2, t1))
                imm = 1024 * (j % 3)
                if imm: P("v_subrev_u32 v%d, %d, v%d" % (t2, imm, t2))
                P("v_lshl_add_u32 v%d, v%d, 4, v%d" % (vDW[j], t0, t2))

    def tabR(self, P, role):
        t0, t1, t2 = vT; L = vLANE
        P("v_and_b32 v%d, 0x13, v%d" % (t0, L))
        P("v_and_b32 v%d, 4, v%d" % (t1, L))
        P("v_lshl_or_b32 v%d, v%d, 1, v%d" % (t0, t1, t0))
        P("v_and_b32 v%d, 8, v%d" % (t1, L))
        P("v_lshrrev_b32 v%d, 1, v%d" % (t1, t1))
        P("v_or_b32 v%d, v%d, v%d" % (t0, t0, t1))
        P("v_lshrrev_b32 v%d, 1, v%d" % (t1, t0))
        P("v_and_b32 v%d, 7, v%d" % (t1, t1))
        P("v_lshrrev_b32 v%d, 5, v%d" % (t2, L))
        P("v_xor_b32 v%d, v%d, v%d" % (t1, t1, t2))
        P("v_lshlrev_b32 v%d, 4, v%d" % (t1, t1))
        P("v_lshl_add_u32 v%d, v%d, 7, v%d" % (t0, t0, t1))
        P("v_add_u32 v%d, s%d, v%d" % (vRP[0], sPB, t0))
        for jj in range(1, 4):
            P("v_xor_b32 v%d, %d, v%d" % (vRP[jj], 32 * jj, vRP[0]))
        pitch = 384 if role == "A" else 320
        P("v_lshrrev_b32 v%d, 2, v%d" % (t0, L))
        P("v_and_b32 v%d, 3, v%d" % (t0, t0))
        P("v_lshl_add_u32 v%d, v%d, 3, v%d" % (t0, t2, t0))
        P("v_mul_u32_u24 v%d, %d, v%d" % (t0, pitch, t0))
        P("v_and_b32 v%d, 1, v%d" % (t1, L))
        P("v_lshlrev_b32 v%d, 4, v%d" % (t1, t1))
        P("v_and_b32 v%d, 2, v%d" % (t2, L))
        P("v_lshl_or_b32 v%d, v%d, 2, v%d" % (t1, t2, t1))
        P("v_and_b32 v%d, 16, v%d" % (t2, L))
        P("v_lshl_or_b32 v%d, v%d, 1, v%d" % (t1, t2, t1))
        P("v_add_u32 v%d, v%d, v%d" % (t0, t0, t1))
        if role == "A":
            P("v_and_b32 v%d, 8, v%d" % (t1, L))
            P("v_lshl_add_u32 v%d, v%d, 3, v%d" % (vRT[0], t1, t0))
            P("v_xor_b32 v%d, 64, v%d" % (vRT[1], vRT[0]))
            P("v_add_u32 v%d, %d, v%d" % (vRT[2], 2 * SLOT, vRT[0]))
            P("v_add_u32 v%d, %d, v%d" % (vRT[3], 2 * SLOT, vRT[1]))
        else:
            P("v_mov_b32 v%d, v%d" % (vRT[0], t0))
            P("v_add_u32 v%d, %d, v%d" % (vRT[1], 2 * SLOT, t0))

    def dmaW(self, role, s, goff):
        so = self.nsoff()
        n = 6 if role == "A" else 5
        base = (s % NSLOT) * SLOT
        atoms = []
        for j in range(n):
            a = []
            if j == 0:
                a += [I("s_add_u32 m0, s%d, %d" % (sWM, base)), I("s_add_u32 s%d, s%d, %d" % (so, sWO_, goff))]
            if j == 3:
                a += [I("s_add_u32 m0, s%d, %d" % (sWM, base + 3072))]
            a.append(I("buffer_load_dwordx4 v%d, %s, s%d offen offset:%d lds" % (vDW[j], srd("wq" if role == "A" else "wo"), so, 1024 * (j % 3)), tag="S%d" % s))
            atoms.append(a)
        return atoms

    def dmaP(self, tensor, regs, sbase, goff, pslot, tag):
        so = self.nsoff()
        atoms = []
        for j in range(4):
            a = []
            if j == 0:
                a += [I("s_add_u32 m0, s%d, %d" % (sPB, pslot * 4096)), I("s_add_u32 s%d, s%d, %d" % (so, sbase, goff))]
            a.append(I("buffer_load_dwordx4 v%d, %s, s%d offen offset:%d lds" % (regs[j], srd(tensor), so, 1024 * j), tag=tag))
            atoms.append(a)
        return atoms

    def readP(self, dst, pslot, tag):
        return [I("ds_read_b128 %s, v%d offset:%d" % (ar(dst + 4 * jj), vRP[jj], pslot * 4096), tag=tag) for jj in range(4)]

    def readW(self, role, s, ks, t, dst):
        slot = s % NSLOT
        hi, lo = slot // 2, slot % 2
        r = []
        for u in range(2):
            if role == "A":
                reg = vRT[2 * hi + (t & 1)]
                off = lo * SLOT + ks * 6144 + 4 * u * 384 + 64 * (t & ~1)
            else:
                reg = vRT[hi]
                off = lo * SLOT + ks * 5120 + 4 * u * 320 + 64 * t
            r.append(I("ds_read_b64_tr_b16 %s, v%d offset:%d" % (ar(dst + 2 * u, 2), reg, off), tag="F%d_%d_%d" % (s, ks, t)))
        return r

    def touch(self, role, g):
        t0, t1, t2 = vT
        a = []
        A = lambda x: a.extend(lines(x))
        def ld(tensor, n, so):
            if n > 32: A("s_mov_b32 exec_hi, 0x%x" % ((1 << (n - 32)) - 1))
            else: A("s_mov_b64 exec, 0x%x" % ((1 << n) - 1) if n < 32 else "s_mov_b32 exec_hi, 0")
            a.append(I("buffer_load_dword a255, v%d, %s, s%d offen" % (t0, srd(tensor), so), tag="TCH"))
            A("s_mov_b64 exec, -1")
        if role == "A":
            ns = 4 if g == 2 else 3
            s0 = 3 * g
            so = self.nsoff()
            A("v_mul_u32_u24 v%d, 5462, v%d\nv_lshrrev_b32 v%d, 16, v%d" % (t0, vLANE, t0, t0))
            A("v_mul_u32_u24 v%d, %d, v%d" % (t0, 12288 - 1536, t0))
            A("v_lshl_add_u32 v%d, v%d, 7, v%d" % (t0, vLANE, t0))
            A("s_mul_i32 s%d, s%d, %d\ns_mul_i32 s%d, s%d, 1536\ns_add_u32 s%d, s%d, s%d\ns_add_u32 s%d, s%d, %d" %
              (so, sJ, ns * 12288, sT0, sXCD, so, so, sT0, so, so, 64 * s0 * 12288))
            ld("wq", 12 * ns, so)
            so = self.nsoff()
            if ns == 3: A("v_mul_u32_u24 v%d, 21846, v%d\nv_lshrrev_b32 v%d, 16, v%d" % (t0, vLANE, t0, t0))
            else: A("v_lshrrev_b32 v%d, 2, v%d" % (t0, vLANE))
            A("v_mul_u32_u24 v%d, %d, v%d" % (t0, 1280 - 128 * ns, t0))
            A("v_lshl_add_u32 v%d, v%d, 7, v%d" % (t0, vLANE, t0))
            A("s_mul_i32 s%d, s%d, %d\ns_add_u32 s%d, s%d, %d" % (so, sJ, 8 * 1280, so, so, 128 * s0))
            ld("x", 8 * ns, so)
        else:
            A("v_lshlrev_b32 v%d, 7, v%d" % (t0, vLANE))
            so = self.nsoff()
            A("s_mul_i32 s%d, s%d, 3840\ns_mul_i32 s%d, s%d, %d\ns_add_u32 s%d, s%d, s%d\ns_add_u32 s%d, s%d, %d" %
              (so, sJ, sT0, sXCD, 4 * 245760, so, so, sT0, so, so, g * 245760))
            ld("wo", 30, so)
            so = self.nsoff()
            A("s_lshr_b32 s%d, s%d, 2\ns_mul_i32 s%d, s%d, 393216\ns_and_b32 s%d, s%d, 3\ns_mul_i32 s%d, s%d, 3072\ns_add_u32 s%d, s%d, s%d" %
              (so, sJ, so, so, sT0, sJ, sT0, sT0, so, so, sT0))
            A("s_mul_i32 s%d, s%d, %d\ns_add_u32 s%d, s%d, s%d\ns_add_u32 s%d, s%d, %d" % (sT0, sXCD, 4 * 12288, so, so, sT0, so, so, g * 12288))
            ld("v", 24, so)
        return a

    def touch_plan(self, role):
        d = {}
        for e in self.c["t" + role].split(","):
            if e:
                g, s = e.split(":"); d.setdefault(int(s), []).append(int(g))
        return d

    def stages(self, P, role, nst, NT, dma_stage, mfma, aW, aP, extra_fill, extra_comp):
        D = self.c["depth"]
        wbuf = lambda s, ks: aW + 4 * NT * ((4 * s + ks) % 2)
        pbuf = lambda s: aP + 16 * (s % 2)
        P("WAITVM S0")
        P("s_barrier")
        self.stamp(P)
        P(self.readP(pbuf(0), 0, "PF0"))
        for t in range(NT): P(self.readW(role, 0, 0, t, wbuf(0, 0) + 4 * t))
        carry = []
        for s in range(nst):
            if s == 0:
                carry = extra_fill(0) + (dma_stage(D) if D < nst else [])
                span = 3
            for ks in range(4):
                if ks == 3:
                    for a in carry: P(a)
                    carry = []
                    if s + 1 < nst:
                        P("WAITVM S%d" % (s + 1))
                        P("s_barrier")
                        carry = extra_fill(s + 1) + (dma_stage(s + 1 + D) if s + 1 + D < nst else [])
                    else:
                        carry = extra_fill(s + 1)
                    span = 4
                ns, nks = (s, ks + 1) if ks < 3 else (s + 1, 0)
                atoms = []
                for t in range(NT):
                    a = []
                    w = ["F%d_%d_%d" % (s, ks, t)]
                    if ks == 0 and t == 0: w.append("PF%d" % s)
                    a.append(I("WAITLG " + " ".join(w)))
                    a.append(mfma(s, ks, t, wbuf(s, ks) + 4 * t, pbuf(s) + 4 * ks))
                    if ns < nst:
                        if nks == 0 and t == 0: a += self.readP(pbuf(ns), ns % 4, "PF%d" % ns)
                        a += self.readW(role, ns, nks, t, wbuf(ns, nks) + 4 * t)
                    atoms.append(a)
                left = {3: 4, 0: 3, 1: 2, 2: 1}[ks]
                if self.c["fillfrac"] < 100: left = max(1, left - 1)
                k = -(-len(carry) // left)
                mine, carry = carry[:k], carry[k:]
                atoms = interleave(atoms, mine)
                ex = extra_comp(s, ks)
                if ex: atoms = interleave(atoms, ex, 1 if len(atoms) > 1 else 0)
                for a in atoms: P(a)
        for a in carry: P(a)

    def nonce_store(self, P):
        P("s_or_b32 s%d, s2, s%d\ns_cmp_lg_u32 s%d, 0\ns_cbranch_scc1 L_nonce" % (sT0, sW, sT0))
        o = "nonce"
        P("s_memrealtime s[%d:%d]\ns_waitcnt lgkmcnt(0)" % (sNONCE, sNONCE + 1), opt=o)
        P("s_or_b32 s%d, s%d, 1" % (sNONCE, sNONCE), opt=o)
        P("v_mov_b32 v%d, s%d" % (vFL, sNONCE), opt=o)
        P("s_mov_b64 exec, 1", opt=o)
        P("buffer_store_dword v%d, v%d, %s, 0 offen sc0 sc1" % (vFL, vZ, srd("dbg")), opt=o)
        P("s_mov_b64 exec, -1", opt=o)
        P("L_nonce:")

    def nonce_load(self):
        return [I("buffer_load_dword v%d, v%d, %s, 0 offen sc0 sc1" % (vFL, vZ, srd("dbg")), tag="NL")]

    def nonce_get(self, lab):
        a = [I("WAITVM NL"), I("s_mov_b32 s%d, %d" % (sSPIN, self.c["spin"])),
             I("L_ng0%s:" % lab),
             I("v_readfirstlane_b32 s%d, v%d" % (sNONCE, vFL)),
             I("s_cmp_lg_u32 s%d, 0" % sNONCE), I("s_cbranch_scc1 L_ng1%s" % lab)]
        for x in ["buffer_load_dword v%d, v%d, %s, 0 offen sc0 sc1" % (vFL, vZ, srd("dbg")), "s_waitcnt vmcnt(0)",
                  "s_sub_u32 s%d, s%d, 1" % (sSPIN, sSPIN), "s_cmp_lg_u32 s%d, 0" % sSPIN, "s_cbranch_scc1 L_ng0%s" % lab]:
            a.append(I(x, opt="ng"))
        a.append(I("L_ng1%s:" % lab))
        a += lines("s_lshl_b32 s%d, s%d, 2\ns_add_u32 s%d, s%d, s%d\ns_lshl_b32 s%d, s%d, 2\ns_add_u32 s%d, s%d, s%d\ns_lshl_b32 s%d, s%d, 7\ns_add_u32 s%d, s%d, %d" %
                   (sFLO, sXCD, sFLO, sFLO, sBQ, sFLO, sFLO, sFLO, sFLO, sW, sFLO, sFLO, sFLO, sFLO, WS_FLAG))
        return a

    def poll(self, P, lab, soff, voff, nreg, lanes_mask=None):
        P("s_mov_b32 s%d, %d" % (sSPIN, self.c["spin"]))
        P("L_%s0:" % lab)
        if nreg == 4:
            P("buffer_load_dwordx4 %s, v%d, %s, s%d offen sc0 sc1" % (vr(vFL), voff, srd("ws"), soff))
        else:
            P("buffer_load_dword v%d, v%d, %s, s%d offen sc0 sc1" % (vFL, voff, srd("ws"), soff))
        P("s_waitcnt vmcnt(0)")
        if nreg == 4:
            for i in range(4): P("v_xor_b32 v%d, s%d, v%d" % (vFL + i, sNONCE, vFL + i))
            P("v_or3_b32 v%d, v%d, v%d, v%d" % (vFL, vFL, vFL + 1, vFL + 2))
            P("v_or_b32 v%d, v%d, v%d" % (vFL, vFL, vFL + 3))
            P("v_cmp_ne_u32 vcc, 0, v%d" % vFL)
        else:
            P("v_cmp_ne_u32 vcc, s%d, v%d" % (sNONCE, vFL))
        P("s_nop 1\ns_cbranch_vccz L_%s1" % lab)
        P("s_sub_u32 s%d, s%d, 1\ns_cmp_lg_u32 s%d, 0\ns_cbranch_scc1 L_%s0" % (sSPIN, sSPIN, sSPIN, lab))
        P("L_%s1:" % lab)

    def roleA(self, P):
        c = self.c
        vQ, vS = 64, 32
        aW, aX, aK = 0, 64, 96
        P("s_lshl_b32 s%d, s%d, 2\ns_add_u32 s%d, s%d, s%d" % (sT0, sXCD, sT0, sT0, sQ))
        P("s_lshl_b32 s%d, s%d, 2\ns_add_u32 s%d, s%d, s%d" % (sT1, sBQ, sT1, sT1, sW))
        if c.get("same"): P("s_mov_b32 s%d, 0\ns_mov_b32 s%d, s%d" % (sT0, sT1, sW))
        P("s_mul_i32 s%d, s%d, 384\ns_mul_i32 s%d, s%d, %d\ns_add_u32 s%d, s%d, s%d" % (sWO_, sT0, sT2, sW, 16 * 12288, sWO_, sWO_, sT2))
        P("s_mul_i32 s%d, s%d, %d" % (sPO_, sT1, 32 * 1280))
        P("s_lshl_b32 s%d, s%d, 5\ns_add_u32 s%d, s%d, s%d\ns_mul_i32 s%d, s%d, 12288" % (sKO, sT1, sKO, sKO, sT0, sKO, sKO))
        P("s_mul_i32 s%d, s%d, 6144" % (sWM, sW))
        self.tabW(P, "A")
        self.tab128(P, [(vDP, 1280)])
        self.srds(P)
        P("s_and_b32 s%d, s%d, 15\ns_lshl_b32 s%d, s%d, 2\ns_add_u32 s%d, s%d, s%d" % (sJ, sI, sJ, sJ, sJ, sJ, sW))
        tp = self.touch_plan("A")
        for g in tp.get(-1, []): P(self.touch("A", g))
        self.nonce_store(P)
        def dma_stage(s):
            return self.dmaW("A", s, s * 64 * 12288) + self.dmaP("x", vDP, sPO_, 128 * s, s % 4, "S%d" % s)
        for s in range(c["depth"]):
            for a in dma_stage(s): P(a)
        self.tabR(P, "A")
        self.tab128(P, [(vDK, 384)])
        def mfma(s, ks, t, w, p):
            cs = "0" if (s == 0 and ks == 0) else vr(vQ + 16 * t, 16)
            return I("%s %s, %s, %s, %s" % (MF, vr(vQ + 16 * t, 16), ar(w), ar(p), cs))
        kp = c["kpos"]
        def extra_fill(s):
            f = [self.touch("A", g) for g in tp.get(s, [])]
            if s == 5: f.append(self.nonce_load())
            if s == 7: f.append(self.nonce_get("A"))
            if s == 8: f += self.dmaP("k", vDK, sKO, 0, 2, "K0") + self.dmaP("k", vDK, sKO, 128, 3, "K1")
            if s == 9: f += self.dmaP("k", vDK, sKO, 256, 0, "K2")
            return f
        self.stages(P, "A", 10, 6, dma_stage, mfma, aW, aX, extra_fill, lambda s, ks: [])
        self.stamp(P)
        for a, sl in enumerate((2, 3, 0)):
            P("WAITVM K%d" % a)
            P(self.readP(aK + 16 * a, sl, "KF%d" % a))
            for t in (2 * a, 2 * a + 1):
                q = vQ + 16 * t
                for i in range(8):
                    P("v_cvt_pk_bf16_f32 v%d, v%d, v%d" % (q + i, q + 2 * i, q + 2 * i + 1))
            P("WAITLG KF%d" % a)
            for jj in range(4):
                j = 4 * a + jj
                cs = "0" if j == 0 else vr(vS, 16)
                P("%s %s, %s, %s, %s" % (MF, vr(vS, 16), ar(aK + 4 * j), vr(vQ + 16 * (j // 2) + 4 * (j % 2)), cs))
        self.stamp(P)
        self.softmax(P, vS)
        P("s_lshl_b32 s%d, s%d, 2\ns_add_u32 s%d, s%d, s%d\ns_lshl_b32 s%d, s%d, 5" % (sT0, sBQ, sT0, sT0, sW, sT0, sT0))
        P("s_lshl_b32 s%d, s%d, 2\ns_add_u32 s%d, s%d, s%d\ns_add_u32 s%d, s%d, s%d\ns_lshl_b32 s%d, s%d, 11" % (sT1, sXCD, sT0, sT0, sT1, sT0, sT0, sQ, sT0, sT0))
        for m in range(2):
            P("buffer_store_dwordx4 %s, v%d, %s, s%d offen offset:%d sc1" % (vr(56 + 4 * m), vL16, srd("ws"), sT0, WS_P + 1024 * m))
        P("s_lshl_b32 s%d, s%d, 2\ns_add_u32 s%d, s%d, s%d" % (sT0, sQ, sT0, sT0, sFLO))
        P("v_mov_b32 v%d, s%d" % (vFL, sNONCE))
        self.stamp(P)
        P("s_waitcnt vmcnt(0)")
        P("s_mov_b64 exec, 1")
        P("buffer_store_dword v%d, v%d, %s, s%d offen sc0 sc1" % (vFL, vZ, srd("ws"), sT0))
        P("s_mov_b64 exec, -1")
        self.stamp(P)

    def softmax(self, P, R):
        m, m2, Q, PB = 48, 49, 50, 56
        P("v_max3_f32 v%d, v%d, v%d, v%d" % (m, R, R + 1, R + 2))
        P("v_max3_f32 v%d, v%d, v%d, v%d" % (m2, R + 3, R + 4, R + 5))
        for i in range(6, 14, 4):
            P("v_max3_f32 v%d, v%d, v%d, v%d" % (m, m, R + i, R + i + 1))
            P("v_max3_f32 v%d, v%d, v%d, v%d" % (m2, m2, R + i + 2, R + i + 3))
        P("v_max3_f32 v%d, v%d, v%d, v%d" % (m, m, R + 14, R + 15))
        P("v_max_f32 v%d, v%d, v%d" % (m, m, m2))
        P("v_mov_b32 v%d, v%d" % (m2, m))
        P("v_permlane32_swap_b32 v%d, v%d" % (m, m2))
        P("v_max_f32 v%d, v%d, v%d" % (m, m, m2))
        cval = struct.unpack("<I", struct.pack("<f", 192 ** -0.5 * math.log2(math.e)))[0]
        P("s_mov_b32 s%d, 0x%x" % (sT0, cval))
        P("v_mul_f32 v%d, s%d, v%d" % (m, sT0, m))
        for i in range(16):
            P("v_fma_f32 v%d, v%d, s%d, -v%d" % (R + i, R + i, sT0, m))
        for i in range(16):
            P("v_exp_f32 v%d, v%d" % (R + i, R + i))
        P("v_add_f32 v%d, v%d, v%d" % (Q, R, R + 1))
        P("v_add_f32 v%d, v%d, v%d" % (Q + 1, R + 2, R + 3))
        P("v_add_f32 v%d, v%d, v%d" % (Q + 2, R + 4, R + 5))
        P("v_add_f32 v%d, v%d, v%d" % (Q + 3, R + 6, R + 7))
        for i in range(8, 16):
            P("v_add_f32 v%d, v%d, v%d" % (Q + i % 4, Q + i % 4, R + i))
        P("v_add_f32 v%d, v%d, v%d" % (Q, Q, Q + 1))
        P("v_add_f32 v%d, v%d, v%d" % (Q + 2, Q + 2, Q + 3))
        P("v_add_f32 v%d, v%d, v%d" % (m, Q, Q + 2))
        P("v_mov_b32 v%d, v%d" % (m2, m))
        P("v_permlane32_swap_b32 v%d, v%d" % (m, m2))
        P("v_add_f32 v%d, v%d, v%d" % (m, m, m2))
        P("v_rcp_f32 v%d, v%d" % (m, m))
        for i in range(16):
            P("v_mul_f32 v%d, v%d, v%d" % (R + i, R + i, m))
        for i in range(8):
            P("v_cvt_pk_bf16_f32 v%d, v%d, v%d" % (PB + i, R + 2 * i, R + 2 * i + 1))

    def roleB(self, P):
        c = self.c
        vU = [64, 144]; vTMP = 32
        aW, aV, aU, aP = 0, 64, 96, 216
        P("s_lshl_b32 s%d, s%d, 2" % (sT0, sXCD))
        P("s_lshl_b32 s%d, s%d, 2\ns_add_u32 s%d, s%d, s%d" % (sT1, sBQ, sT1, sT1, sW))
        if c.get("same"): P("s_mov_b32 s%d, 0\ns_mov_b32 s%d, s%d" % (sT0, sT1, sW))
        P("s_mul_i32 s%d, s%d, 245760\ns_mul_i32 s%d, s%d, %d\ns_add_u32 s%d, s%d, s%d" % (sWO_, sT0, sT2, sW, 16 * 1280, sWO_, sWO_, sT2))
        P("s_mul_i32 s%d, s%d, 320\ns_add_u32 s%d, s%d, s%d" % (sT2, sQ, sWO_, sWO_, sT2))
        P("s_lshl_b32 s%d, s%d, 5\ns_add_u32 s%d, s%d, s%d\ns_mul_i32 s%d, s%d, 12288" % (sPO_, sT1, sPO_, sPO_, sT0, sPO_, sPO_))
        P("s_mul_i32 s%d, s%d, 5120" % (sWM, sW))
        self.tabW(P, "B")
        self.tab128(P, [(vDP, 384)])
        self.srds(P)
        P("s_and_b32 s%d, s%d, 15\ns_lshl_b32 s%d, s%d, 2\ns_add_u32 s%d, s%d, s%d" % (sJ, sI, sJ, sJ, sJ, sJ, sW))
        tp = self.touch_plan("B")
        for e in c.get("tBA", "").split(","):
            if e: P(self.touch("A", int(e)))
        for g in tp.get(-1, []): P(self.touch("B", g))
        def dma_stage(s):
            h, a = divmod(s, 3)
            return self.dmaW("B", s, s * 64 * 1280) + self.dmaP("v", vDP, sPO_, h * 12288 + 128 * a, s % 4, "S%d" % s)
        for s in range(c["depth"]):
            for a in dma_stage(s): P(a)
        self.tabR(P, "B")
        def mfma(s, ks, t, w, p):
            u = vU[(s // 3) % 2] + 16 * t
            cs = "0" if (s % 3 == 0 and ks == 0) else vr(u, 16)
            return I("%s %s, %s, %s, %s" % (MF, vr(u, 16), ar(p), ar(w), cs))
        def extra_fill(s):
            f = [self.touch("B", g) for g in tp.get(s, [])]
            if s == 6: f.append(self.nonce_load())
            if s == 8: f.append(self.nonce_get("B"))
            return f
        def extra_comp(s, ks):
            h, a = divmod(s, 3)
            if h == 0: return []
            n = 4 * a + ks - 1
            if n < 0 or n >= 10: return []
            t, half = divmod(n, 2)
            u = vU[(h - 1) % 2] + 16 * t + 8 * half
            r = []
            for i in range(4):
                r.append([I("v_cvt_pk_bf16_f32 v%d, v%d, v%d" % (vTMP + (4 * n + i) % 8, u + 2 * i, u + 2 * i + 1)),
                          I("v_accvgpr_write_b32 a%d, v%d" % (aU + 40 * (h - 1) + 8 * t + 4 * half + i, vTMP + (4 * n + i) % 8))])
            return r
        self.stages(P, "B", 12, 5, dma_stage, mfma, aW, aV, extra_fill, extra_comp)
        self.stamp(P)
        u3 = vU[1]
        for t in range(5):
            for i in range(8):
                P("v_cvt_pk_bf16_f32 v%d, v%d, v%d" % (u3 + 16 * t + i, u3 + 16 * t + 2 * i, u3 + 16 * t + 2 * i + 1))
        self.stamp(P)
        self.poll(P, "pp", sFLO, vZ, 4)
        self.stamp(P)
        P("s_lshl_b32 s%d, s%d, 2\ns_add_u32 s%d, s%d, s%d\ns_lshl_b32 s%d, s%d, 5" % (sT0, sBQ, sT0, sT0, sW, sT0, sT0))
        P("s_lshl_b32 s%d, s%d, 2\ns_add_u32 s%d, s%d, s%d\ns_lshl_b32 s%d, s%d, 11\ns_add_u32 s%d, s%d, 4096" % (sT1, sXCD, sT0, sT0, sT1, sT0, sT0, sT1, sT0))
        for h in range(4):
            for m in range(2):
                P(I("buffer_load_dwordx4 %s, v%d, %s, s%d offen offset:%d sc1" % (ar(aP + 8 * h + 4 * m), vL16, srd("ws"), (sT0, sT1)[h // 2], WS_P + (h % 2) * 2048 + 1024 * m), tag="PL"))
        P("s_and_b32 s%d, s%d, 15\ns_lshl_b32 s%d, s%d, 3\ns_add_u32 s%d, s%d, s%d" % (sT2, sI, sT2, sT2, sT2, sT2, sXCD))
        P("s_lshl_b32 s%d, s%d, 2\ns_add_u32 s%d, s%d, s%d\ns_mul_i32 s%d, s%d, 10240\ns_add_u32 s%d, s%d, %d" % (sT2, sT2, sT2, sT2, sW, sT2, sT2, sT2, sT2, WS_PART))
        P("WAITVM PL")
        self.stamp(P)
        vO = vU[0]
        fl = "sc1" if c["mode"] == "h1" else ""
        def pu(t):
            r = []
            for h in range(4):
                for m in range(2):
                    ua = ar(aU + 40 * h + 8 * t + 4 * m) if h < 3 else vr(u3 + 16 * t + 4 * m)
                    cs = "0" if (h == 0 and m == 0) else vr(vO + 16 * t, 16)
                    r.append([I("%s %s, %s, %s, %s" % (MF, vr(vO + 16 * t, 16), ua, ar(aP + 8 * h + 4 * m), cs))])
            return r
        def fin(t):
            o = vO + 16 * t
            r = [[I("v_cvt_pk_bf16_f32 v%d, v%d, v%d" % (o + i, o + 2 * i, o + 2 * i + 1))] for i in range(8)]
            so = self.nsoff()
            r.append([I("s_add_u32 s%d, s%d, %d" % (so, sT2, 2048 * t)),
                      I("buffer_store_dwordx4 %s, v%d, %s, s%d offen %s" % (vr(o), vL16, srd("ws"), so, fl), tag="OST")])
            r.append([I("buffer_store_dwordx4 %s, v%d, %s, s%d offen offset:1024 %s" % (vr(o + 4), vL16, srd("ws"), so, fl), tag="OST")])
            return r
        for t in range(5):
            at = pu(t)
            if t: at = interleave(at, fin(t - 1), 3, 8)
            for a in at: P(a)
        for a in fin(4): P(a)
        self.stamp(P)
        if c["mode"] == "h1":
            P("s_and_b32 s%d, s%d, 15\ns_lshl_b32 s%d, s%d, 5\ns_lshl_b32 s%d, s%d, 2\ns_add_u32 s%d, s%d, s%d\ns_add_u32 s%d, s%d, s%d" %
              (sT0, sI, sT0, sT0, sT1, sXCD, sT0, sT0, sT1, sT0, sT0, sW))
            P("s_lshl_b32 s%d, s%d, 2\ns_add_u32 s%d, s%d, %d" % (sT0, sT0, sT0, sT0, WS_FLAG2))
            P("v_mov_b32 v%d, s%d" % (vFL, sNONCE))
            P("s_waitcnt vmcnt(0)")
            P("s_mov_b64 exec, 1")
            P("buffer_store_dword v%d, v%d, %s, s%d offen sc0 sc1" % (vFL, vZ, srd("ws"), sT0))
            P("s_mov_b64 exec, -1")
            self.stamp(P)

    def reduce(self, P, fused):
        u, blk, ln, off, T, b = 2, 3, 4, 5, 6, 7
        P("s_lshr_b32 s%d, s%d, 4\ns_lshl_b32 s%d, s%d, 3\ns_add_u32 s%d, s%d, s%d" % (sT2, sI, sT2, sT2, sT2, sT2, sXCD))
        P("s_mul_i32 s%d, s%d, 160\ns_mul_i32 s%d, s%d, 40\ns_add_u32 s%d, s%d, s%d" % (sT0, sT2, sT1, sW, sT0, sT0, sT1))
        P("v_add_u32 v%d, s%d, v%d" % (u, sT0, vLANE))
        P("v_lshrrev_b32 v%d, 6, v%d" % (blk, u))
        P("v_and_b32 v%d, 63, v%d" % (ln, u))
        P("v_lshlrev_b32 v%d, 4, v%d" % (off, u))
        P("v_and_b32 v%d, 0x13, v%d" % (T, ln))
        P("v_and_b32 v%d, 4, v%d" % (b, ln))
        P("v_lshl_or_b32 v%d, v%d, 1, v%d" % (T, b, T))
        P("v_and_b32 v%d, 8, v%d" % (b, ln))
        P("v_lshrrev_b32 v%d, 1, v%d" % (b, b))
        P("v_or_b32 v%d, v%d, v%d" % (T, T, b))
        P("v_mul_u32_u24 v%d, 1280, v%d" % (T, T))
        P("v_lshl_add_u32 v%d, v%d, 5, v%d" % (T, blk, T))
        P("v_lshrrev_b32 v%d, 5, v%d" % (b, ln))
        P("v_lshl_add_u32 v%d, v%d, 4, v%d" % (b, b, T))
        so = sSOFF[0]
        P("s_lshr_b32 s%d, s%d, 2" % (sT2, sT2))
        P("s_mul_i32 s%d, s%d, %d" % (so, sT2, 32 * 1280 - 320))
        P("s_mul_i32 s%d, s%d, %d\ns_add_u32 s%d, s%d, s%d" % (sT1, sBQ, 128 * 1280, so, so, sT1))
        P("s_mul_i32 s%d, s%d, 320\ns_add_u32 s%d, s%d, s%d" % (sT1, sQ, so, so, sT1))
        ld = ""
        if fused:
            P("s_and_b32 s%d, s%d, 15\ns_lshl_b32 s%d, s%d, 5\ns_add_u32 s%d, s%d, s%d\ns_lshl_b32 s%d, s%d, 2\ns_add_u32 s%d, s%d, %d" %
              (sT0, sI, sT0, sT0, sT0, sT0, sT2, sT0, sT0, sT0, sT0, WS_FLAG2))
            P("v_and_b32 v8, 7, v%d\nv_lshlrev_b32 v8, 4, v8" % vLANE)
            self.poll(P, "rp", sT0, 8, 1)
            self.stamp(P)
            ld = "sc1"
        P("s_and_b32 s%d, s%d, 15\ns_mul_i32 s%d, s%d, %d\ns_add_u32 s%d, s%d, %d" % (sT0, sI, sT0, sT0, 8 * 40960, sT0, sT0, WS_PART))
        P("s_mov_b32 exec_hi, 0xff")
        D = 32
        for x in range(8):
            P(I("buffer_load_dwordx4 %s, v%d, %s, s%d offen %s" % (vr(D + 8 * x), off, srd("ws"), sT0, ld), tag="R%d" % x))
            if x < 7: P("s_add_u32 s%d, s%d, 40960" % (sT0, sT0))
        A = 100
        for x in range(8):
            P("WAITVM R%d" % x)
            d = D + 8 * x
            for i in (3, 2, 1, 0):
                P("v_and_b32 v%d, 0xffff0000, v%d" % (d + 2 * i + 1, d + i))
                P("v_lshlrev_b32 v%d, 16, v%d" % (d + 2 * i, d + i))
            if x > 0:
                for i in range(0, 8, 2):
                    P("v_pk_add_f32 v[%d:%d], v[%d:%d], v[%d:%d]" % (D + i, D + i + 1, D + i, D + i + 1, d + i, d + i + 1))
        for i in range(4):
            P("v_cvt_pk_bf16_f32 v%d, v%d, v%d" % (A + i, D + 2 * i, D + 2 * i + 1))
        P("buffer_store_dwordx4 %s, v%d, %s, s%d offen" % (vr(A), b, srd("out"), so))

    def fin(self, P):
        if self.c.get("nomfma"):
            P.ins = [x for x in P.ins if not x.txt.startswith("v_mfma")]
        return P.finalize()

    def main_kernel(self):
        fused = self.c["mode"] == "h1"
        P0 = Prog(); self.prologue(P0, "L_end")
        P0("s_cmp_ge_u32 s%d, 16\ns_cbranch_scc1 L_roleB" % sI)
        n0 = self.nst
        txt = self.fin(P0)
        for role in "AB":
            P = Prog(); self.nst = n0
            if role == "B": P("L_roleB:")
            P("s_nop 4")
            (self.roleA if role == "A" else self.roleB)(P)
            if fused:
                P("s_branch L_red" if role == "A" else "s_nop 0")
            else:
                self.dump_stamps(P, 0)
                P("s_endpgm")
            txt += self.fin(P)
        if fused:
            P = Prog(); P("L_red:"); P("s_nop 4")
            self.nst = 12
            self.reduce(P, True)
            self.stamp(P)
            self.dump_stamps(P, 0)
            txt += self.fin(P)
        txt += "L_end:\n    s_endpgm\n"
        return txt

    def red_kernel(self):
        P = Prog(); self.prologue(P, "L_end3"); self.srds(P)
        self.reduce(P, False); self.stamp(P); self.dump_stamps(P, 1)
        P("L_end3:\ns_endpgm")
        return self.fin(P)

    def build(self):
        c = self.c
        if c["mode"] == "h2":
            ks = [("gqa1_kernel", self.main_kernel, 512, 163840), ("gqa3_kernel", self.red_kernel, 128, 0)]
        else:
            ks = [(NAME + "_kernel", self.main_kernel, 512, 163840)]
        txt = HDR
        if len(ks) == 1:
            txt += "; @launch grid=(256,1,1) block=(256,1,1) lds=163840\n"
        else:
            for (lab, _, _, lds) in ks:
                txt += "; @launch kernel=%s grid=(256,1,1) block=(256,1,1) lds=%d\n" % (lab, lds)
        txt += '.amdgcn_target "amdgcn-amd-amdhsa--gfx950"\n.text\n'
        kds = ""
        for (lab, body, vg, _) in ks:
            txt += ".globl %s\n.p2align 8\n.type %s,@function\n%s:\n" % (lab, lab, lab) + body()
            acc = 256 if vg > 256 else vg
            kds += (".p2align 6\n.amdhsa_kernel %s\n  .amdhsa_next_free_vgpr %d\n  .amdhsa_next_free_sgpr 102\n  .amdhsa_accum_offset %d\n"
                    "  .amdhsa_group_segment_fixed_size 0\n  .amdhsa_kernarg_size 64\n  .amdhsa_user_sgpr_count 2\n"
                    "  .amdhsa_user_sgpr_kernarg_segment_ptr 1\n  .amdhsa_system_sgpr_workgroup_id_x 1\n.end_amdhsa_kernel\n") % (lab, vg, acc)
        txt += '.section .rodata,"a"\n' + kds
        return txt

if __name__ == "__main__":
    out = sys.argv[1]
    kw = {}
    for a in sys.argv[2:]:
        k, v = a.split("=", 1)
        kw[k] = int(v) if v.lstrip("-").isdigit() else v
    open(out, "w").write(Gen(**kw).build())
```

```python
import sys, math, struct
from asmlib import *

NAME = "standalone__gqa_block_cached__near_ridge"
HDR = open("cdna_kernels/%s.s.ref" % NAME).read().split("; Override launch")[0]

DEF = dict(stamps=0, spin=20000, depth=2,
           tA="", tB="", ststage=0, rot=1, rpg=2, wgrp=1, sent=1, pollfl="sc1", stfl="sc1", apoll=1, asleep=0, clrpos=1, chkA=7, chkB=9, tlb=1, pdelay=0, rdelay=0, preP=7, preS=-1, kpos=8, bdelay=0, fillfrac=100)

sW, sXCD, sI, sQ, sBQ = 3, 4, 5, 6, 7
sPB = 8
sWO_, sPO_, sKO = 9, 10, 11
sWM = 12
sT0, sT1, sT2 = 13, 14, 15
sNONCE, sSPIN, sFLO, sJ = 16, 17, 18, 19
sDUM = 2
sPST = sKO
SRD = dict(x=32, k=36, v=40, wq=44, wo=48, out=52, ws=56, dbg=60)
KOFF = dict(x=0, k=8, v=16, wq=24, wo=32, out=40, dbg=48, ws=56)
PTR = dict(x=16, k=18, v=20, wq=22, wo=24, out=26, dbg=28, ws=30)
SIZE = dict(x=655360, k=6291456, v=6291456, wq=7864320, wo=7864320, out=655360, dbg=256, ws=268435456)
sRW = [20, 21, 22, 23, 24, 25]
sRP = [26, 27, 28, 29, 30, 31]
sSOFF = [64, 65, 66, 67]
sSTAMP = 70
vZ = 0
vLANE = 1
vDW = [2, 3, 4, 5, 6, 7]
vDP = [8, 9, 10, 11]
vDK = [12, 13, 14, 15]
vRP = [16, 17, 18, 19]
vRT = [20, 21, 22, 23]
vL16 = 24
vT = [25, 26, 27]
vFL = 28
WS_P = 0
WS_PART = 2 << 20
SLAB = 14336
WS_FLAG = 16 << 20
WS_FLAG2 = WS_FLAG + (1 << 16)
WS_STAMP = 32 << 20
NSLOT = 4
SLOT = 24576
PRIV0 = NSLOT * SLOT
MF = "v_mfma_f32_32x32x16_bf16"

def srd(n): return "s[%d:%d]" % (SRD[n], SRD[n] + 3)
def vr(b, n=4): return "v[%d:%d]" % (b, b + n - 1)
def ar(b, n=4): return "a[%d:%d]" % (b, b + n - 1)
def lines(x): return [I(l) for l in x.split("\n") if l.strip()]

class Gen:
    def __init__(self, **kw):
        self.c = dict(DEF); self.c.update(kw)
        self.nst = 0; self.soffi = 0

    def nsoff(self):
        s = sSOFF[self.soffi % len(sSOFF)]; self.soffi += 1
        return s

    def stamp_i(self):
        if not self.c["stamps"]: return []
        r = sSTAMP + 2 * self.nst; self.nst += 1
        if r + 1 > 101: return []
        return [I("%s s[%d:%d]" % ("s_memrealtime" if self.c["stamps"] == 2 else "s_memtime", r, r + 1))]
    def stamp(self, P): P(self.stamp_i())

    def dump_stamps(self, P, kidx):
        if not self.c["stamps"]: return
        P("s_waitcnt lgkmcnt(0)")
        P("s_lshl_b32 s%d, s%d, 3\ns_add_u32 s%d, s%d, s%d" % (sT0, sI, sT0, sT0, sXCD))
        P("s_lshl_b32 s%d, s%d, 2" % (sT0, sT0))
        P("s_add_u32 s%d, s%d, s%d" % (sT0, sT0, sW))
        P("s_lshl_b32 s%d, s%d, 8" % (sT0, sT0))
        P("s_add_u32 s%d, s%d, %d" % (sT0, sT0, WS_STAMP + (kidx << 20)))
        P("s_mov_b64 exec, 1")
        P("v_mov_b32 v2, 0")
        for i in range(16):
            P("v_mov_b32 v4, s%d\nv_mov_b32 v5, s%d" % (sSTAMP + 2 * i, sSTAMP + 2 * i + 1))
            P("buffer_store_dwordx2 v[4:5], v2, %s, s%d offen offset:%d" % (srd("ws"), sT0, 8 * i))
            P("s_nop 1")
        P("s_memrealtime s[%d:%d]\ns_waitcnt lgkmcnt(0)" % (sSTAMP, sSTAMP + 1))
        P("v_mov_b32 v4, s%d\nv_mov_b32 v5, s%d" % (sSTAMP, sSTAMP + 1))
        P("buffer_store_dwordx2 v[4:5], v2, %s, s%d offen offset:248" % (srd("ws"), sT0))
        P("s_nop 1")
        P("v_mov_b32 v4, s68\nv_mov_b32 v5, s69")
        P("buffer_store_dwordx2 v[4:5], v2, %s, s%d offen offset:240" % (srd("ws"), sT0))

    def prologue(self, P, lend):
        self.nst = 0
        if self.c["stamps"]:
            for r in range(sSTAMP, 102, 2): P("s_mov_b64 s[%d:%d], 0" % (r, r + 1))
            P("s_memrealtime s[68:69]")
        self.stamp(P)
        P("s_cmp_ge_u32 s2, 256\ns_cbranch_scc1 %s" % lend)
        for n in ("wq", "x", "wo", "v", "ws", "k", "dbg", "out"):
            P("s_load_dwordx2 s[%d:%d], s[0:1], %d" % (SRD[n], SRD[n] + 1, KOFF[n]))
        P("v_lshrrev_b32 v2, 6, v0")
        P("v_and_b32 v%d, 63, v0" % vLANE)
        P("v_readfirstlane_b32 s%d, v2" % sW)
        P("s_and_b32 s%d, s2, 7" % sXCD)
        P("s_lshr_b32 s%d, s2, 3" % sI)
        P("s_and_b32 s%d, s%d, 3" % (sQ, sI))
        P("s_bfe_u32 s%d, s%d, 0x20002" % (sBQ, sI))
        P("s_lshl_b32 s%d, s%d, 14\ns_add_u32 s%d, s%d, %d" % (sPB, sW, sPB, sPB, PRIV0))
        P("v_mov_b32 v%d, 0" % vZ)
        P("v_lshlrev_b32 v%d, 4, v%d" % (vL16, vLANE))

    def srds(self, P):
        for n in SRD:
            b = SRD[n]
            P("s_mov_b32 s%d, %d\ns_mov_b32 s%d, 0x20000" % (b + 2, SIZE[n], b + 3))
        P("s_and_b32 s%d, s%d, 15\ns_lshl_b32 s%d, s%d, 2\ns_add_u32 s%d, s%d, s%d" % (sJ, sI, sJ, sJ, sJ, sJ, sW))
        P("s_waitcnt lgkmcnt(0)")
        self.stamp(P)

    def tab128(self, P, tabs):
        t0, t1, t2 = vT; L = vLANE
        P("v_lshrrev_b32 v%d, 3, v%d" % (t0, L))
        P("v_lshrrev_b32 v%d, 4, v%d" % (t1, L))
        P("v_xor_b32 v%d, v%d, v%d" % (t1, t1, L))
        P("v_and_b32 v%d, 7, v%d" % (t1, t1))
        P("v_lshlrev_b32 v%d, 4, v%d" % (t1, t1))
        P("v_xor_b32 v%d, 64, v%d" % (t2, t1))
        for regs, pitch in tabs:
            P("v_mul_u32_u24 v%d, %d, v%d" % (regs[3], pitch, t0))
            P("v_add_u32 v%d, v%d, v%d" % (regs[0], regs[3], t1))
            P("v_add_u32 v%d, v%d, v%d" % (regs[1], regs[3], t2))
            P("v_add_u32 v%d, %d, v%d" % (regs[2], 2 * (8 * pitch - 1024), regs[0]))
            P("v_add_u32 v%d, %d, v%d" % (regs[3], 3 * (8 * pitch - 1024), regs[1]))
            P("v_add_u32 v%d, %d, v%d" % (regs[1], 8 * pitch - 1024, regs[1]))

    def tabW(self, P, role):
        t0, t1, t2 = vT; L = vLANE
        if role == "A":
            for j in range(3):
                P("v_add_u32 v%d, %d, v%d" % (t0, 64 * j, L))
                P("v_mul_u32_u24 v%d, 2731, v%d" % (t1, t0))
                P("v_lshrrev_b32 v%d, 16, v%d" % (t1, t1))
                P("v_mul_u32_u24 v%d, 24, v%d" % (t2, t1))
                P("v_sub_u32 v%d, v%d, v%d" % (t0, t0, t2))
                P("v_and_b32 v%d, 2, v%d" % (t2, t1))
                P("v_lshlrev_b32 v%d, 1, v%d" % (t2, t2))
                P("v_xor_b32 v%d, v%d, v%d" % (t0, t0, t2))
                P("v_mul_u32_u24 v%d, 12288, v%d" % (t2, t1))
                P("v_lshl_add_u32 v%d, v%d, 4, v%d" % (t0, t0, t2))
                if j: P("v_subrev_u32 v%d, %d, v%d" % (t0, 1024 * j, t0))
                P("v_mov_b32 v%d, v%d" % (vDW[j], t0))
                P("v_add_u32 v%d, %d, v%d" % (vDW[j + 3], 8 * 12288, t0))
        else:
            for j in range(5):
                P("v_add_u32 v%d, %d, v%d" % (t0, 64 * j, L))
                P("v_mul_u32_u24 v%d, 3277, v%d" % (t1, t0))
                P("v_lshrrev_b32 v%d, 16, v%d" % (t1, t1))
                P("v_mul_u32_u24 v%d, 20, v%d" % (t2, t1))
                P("v_sub_u32 v%d, v%d, v%d" % (t0, t0, t2))
                P("v_mul_u32_u24 v%d, 1280, v%d" % (t2, t1))
                imm = 1024 * (j % 3)
                if imm: P("v_subrev_u32 v%d, %d, v%d" % (t2, imm, t2))
                P("v_lshl_add_u32 v%d, v%d, 4, v%d" % (vDW[j], t0, t2))

    def tabR(self, P, role):
        t0, t1, t2 = vT; L = vLANE
        P("v_and_b32 v%d, 0x13, v%d" % (t0, L))
        P("v_and_b32 v%d, 4, v%d" % (t1, L))
        P("v_lshl_or_b32 v%d, v%d, 1, v%d" % (t0, t1, t0))
        P("v_and_b32 v%d, 8, v%d" % (t1, L))
        P("v_lshrrev_b32 v%d, 1, v%d" % (t1, t1))
        P("v_or_b32 v%d, v%d, v%d" % (t0, t0, t1))
        P("v_lshrrev_b32 v%d, 1, v%d" % (t1, t0))
        P("v_and_b32 v%d, 7, v%d" % (t1, t1))
        P("v_lshrrev_b32 v%d, 5, v%d" % (t2, L))
        P("v_xor_b32 v%d, v%d, v%d" % (t1, t1, t2))
        P("v_lshlrev_b32 v%d, 4, v%d" % (t1, t1))
        P("v_lshl_add_u32 v%d, v%d, 7, v%d" % (t0, t0, t1))
        P("v_add_u32 v%d, s%d, v%d" % (vRP[0], sPB, t0))
        for jj in range(1, 4):
            P("v_xor_b32 v%d, %d, v%d" % (vRP[jj], 32 * jj, vRP[0]))
        pitch = 384 if role == "A" else 320
        P("v_lshrrev_b32 v%d, 2, v%d" % (t0, L))
        P("v_and_b32 v%d, 3, v%d" % (t0, t0))
        P("v_lshl_add_u32 v%d, v%d, 3, v%d" % (t0, t2, t0))
        P("v_mul_u32_u24 v%d, %d, v%d" % (t0, pitch, t0))
        P("v_and_b32 v%d, 1, v%d" % (t1, L))
        if role == "A": P("v_lshlrev_b32 v%d, 4, v%d" % (t1, t1))
        else: P("v_mul_u32_u24 v%d, 160, v%d" % (t1, t1))
        P("v_and_b32 v%d, 2, v%d" % (t2, L))
        P("v_lshl_or_b32 v%d, v%d, 2, v%d" % (t1, t2, t1))
        P("v_and_b32 v%d, 16, v%d" % (t2, L))
        if role == "A": P("v_lshl_or_b32 v%d, v%d, 1, v%d" % (t1, t2, t1))
        else: P("v_or_b32 v%d, v%d, v%d" % (t1, t2, t1))
        P("v_add_u32 v%d, v%d, v%d" % (t0, t0, t1))
        if role == "A":
            P("v_and_b32 v%d, 8, v%d" % (t1, L))
            P("v_lshl_add_u32 v%d, v%d, 3, v%d" % (vRT[0], t1, t0))
            P("v_xor_b32 v%d, 64, v%d" % (vRT[1], vRT[0]))
            P("v_add_u32 v%d, %d, v%d" % (vRT[2], 2 * SLOT, vRT[0]))
            P("v_add_u32 v%d, %d, v%d" % (vRT[3], 2 * SLOT, vRT[1]))
        else:
            P("v_mov_b32 v%d, v%d" % (vRT[0], t0))
            P("v_add_u32 v%d, %d, v%d" % (vRT[1], 2 * SLOT, t0))

    def dmaW(self, role, s, sbase, goff):
        so = self.nsoff()
        n = 6 if role == "A" else 5
        base = (s % NSLOT) * SLOT
        atoms = []
        for j in range(n):
            a = []
            if j == 0:
                a += [I("s_add_u32 m0, s%d, %d" % (sWM, base)), I("s_add_u32 s%d, s%d, %d" % (so, sbase, goff))]
            if j == 3:
                a += [I("s_add_u32 m0, s%d, %d" % (sWM, base + 3072))]
            a.append(I("buffer_load_dwordx4 v%d, %s, s%d offen offset:%d lds" % (vDW[j], srd("wq" if role == "A" else "wo"), so, 1024 * (j % 3)), tag="S%d" % s))
            atoms.append(a)
        return atoms

    def dmaP(self, tensor, regs, sbase, goff, pslot, tag):
        so = self.nsoff()
        atoms = []
        for j in range(4):
            a = []
            if j == 0:
                a += [I("s_add_u32 m0, s%d, %d" % (sPB, pslot * 4096)), I("s_add_u32 s%d, s%d, %d" % (so, sbase, goff))]
            a.append(I("buffer_load_dwordx4 v%d, %s, s%d offen offset:%d lds" % (regs[j], srd(tensor), so, 1024 * j), tag=tag))
            atoms.append(a)
        return atoms

    def readP(self, dst, pslot, tag):
        return [I("ds_read_b128 %s, v%d offset:%d" % (ar(dst + 4 * jj), vRP[jj], pslot * 4096), tag=tag) for jj in range(4)]

    def readW(self, role, s, ks, t, dst):
        slot = s % NSLOT
        hi, lo = slot // 2, slot % 2
        r = []
        for u in range(2):
            if role == "A":
                reg = vRT[2 * hi + (t & 1)]
                off = lo * SLOT + ks * 6144 + 4 * u * 384 + 64 * (t & ~1)
            else:
                reg = vRT[hi]
                off = lo * SLOT + ks * 5120 + 4 * u * 320 + 32 * t
            r.append(I("ds_read_b64_tr_b16 %s, v%d offset:%d" % (ar(dst + 2 * u, 2), reg, off), tag="F%d_%d_%d" % (s, ks, t)))
        return r

    def touch(self, role, g):
        t0, t1, t2 = vT
        a = []
        A = lambda x: a.extend(lines(x))
        def ld(tensor, n, so):
            if n > 32: A("s_mov_b32 exec_hi, 0x%x" % ((1 << (n - 32)) - 1))
            else: A("s_mov_b64 exec, 0x%x" % ((1 << n) - 1) if n < 32 else "s_mov_b32 exec_hi, 0")
            a.append(I("buffer_load_dword a255, v%d, %s, s%d offen" % (t0, srd(tensor), so), tag="TCH"))
            A("s_mov_b64 exec, -1")
        if role == "A":
            ns = 4 if g == 2 else 3
            s0 = 3 * g
            so = self.nsoff()
            A("v_mul_u32_u24 v%d, 5462, v%d\nv_lshrrev_b32 v%d, 16, v%d" % (t0, vLANE, t0, t0))
            A("v_mul_u32_u24 v%d, %d, v%d" % (t0, 12288 - 1536, t0))
            A("v_lshl_add_u32 v%d, v%d, 7, v%d" % (t0, vLANE, t0))
            A("s_mul_i32 s%d, s%d, %d\ns_mul_i32 s%d, s%d, 1536\ns_add_u32 s%d, s%d, s%d\ns_add_u32 s%d, s%d, %d" %
              (so, sJ, ns * 12288, sT0, sXCD, so, so, sT0, so, so, 64 * s0 * 12288))
            ld("wq", 12 * ns, so)
            so = self.nsoff()
            if ns == 3: A("v_mul_u32_u24 v%d, 21846, v%d\nv_lshrrev_b32 v%d, 16, v%d" % (t0, vLANE, t0, t0))
            else: A("v_lshrrev_b32 v%d, 2, v%d" % (t0, vLANE))
            A("v_mul_u32_u24 v%d, %d, v%d" % (t0, 1280 - 128 * ns, t0))
            A("v_lshl_add_u32 v%d, v%d, 7, v%d" % (t0, vLANE, t0))
            A("s_mul_i32 s%d, s%d, %d\ns_add_u32 s%d, s%d, %d" % (so, sJ, 8 * 1280, so, so, 128 * s0))
            ld("x", 8 * ns, so)
        elif role == "K":
            A("v_lshlrev_b32 v%d, 7, v%d" % (t0, vLANE))
            so = self.nsoff()
            A("s_lshr_b32 s%d, s%d, 2\ns_lshl_b32 s%d, s%d, 5\ns_and_b32 s%d, s%d, 3\ns_add_u32 s%d, s%d, s%d" % (so, sJ, so, so, sT0, sJ, so, so, sT0))
            A("s_lshl_b32 s%d, s%d, 2\ns_add_u32 s%d, s%d, s%d\ns_mul_i32 s%d, s%d, 12288\ns_add_u32 s%d, s%d, %d" % (sT0, sXCD, so, so, sT0, so, so, so, so, g * 6144))
            ld("k", 48, so)
        else:
            A("v_lshlrev_b32 v%d, 7, v%d" % (t0, vLANE))
            so = self.nsoff()
            A("s_mul_i32 s%d, s%d, 3840\ns_mul_i32 s%d, s%d, %d\ns_add_u32 s%d, s%d, s%d\ns_add_u32 s%d, s%d, %d" %
              (so, sJ, sT0, sXCD, 4 * 245760, so, so, sT0, so, so, g * 245760))
            ld("wo", 30, so)
            so = self.nsoff()
            A("s_lshr_b32 s%d, s%d, 2\ns_mul_i32 s%d, s%d, 393216\ns_and_b32 s%d, s%d, 3\ns_mul_i32 s%d, s%d, 3072\ns_add_u32 s%d, s%d, s%d" %
              (so, sJ, so, so, sT0, sJ, sT0, sT0, so, so, sT0))
            A("s_mul_i32 s%d, s%d, %d\ns_add_u32 s%d, s%d, s%d\ns_add_u32 s%d, s%d, %d" % (sT0, sXCD, 4 * 12288, so, so, sT0, so, so, g * 12288))
            ld("v", 24, so)
        return a

    def touch_plan(self, role):
        d = {}
        for e in self.c["t" + role].split(","):
            if e:
                g, s = e.split(":"); d.setdefault(int(s), []).append((g[0], int(g[1:])))
        return d

    def stages(self, P, role, nst, NT, dma_stage, mfma, aW, aP, extra_fill, extra_comp):
        D = self.c["depth"]
        wbuf = lambda s, ks: aW + 4 * NT * ((4 * s + ks) % 2)
        pbuf = lambda s: aP + 16 * (s % 2)
        P("WAITVM S0")
        P("s_barrier")
        self.stamp(P)
        P(self.readP(pbuf(0), 0, "PF0"))
        for t in range(NT): P(self.readW(role, 0, 0, t, wbuf(0, 0) + 4 * t))
        carry = []
        for s in range(nst):
            if s == 0:
                carry = extra_fill(0) + (dma_stage(D) if D < nst else [])
                span = 3
            for ks in range(4):
                if ks == 3:
                    for a in carry: P(a)
                    carry = []
                    if D >= 3: P("WAITLG F%d_3_%d" % (s, NT - 1))
                    if s + 1 < nst:
                        P("WAITVM S%d" % (s + 1))
                        P("s_barrier")
                        if self.c["ststage"]: self.stamp(P)
                        carry = extra_fill(s + 1) + (dma_stage(s + 1 + D) if s + 1 + D < nst else [])
                    else:
                        carry = extra_fill(s + 1)
                    span = 4
                ns, nks = (s, ks + 1) if ks < 3 else (s + 1, 0)
                rds = []
                if ns < nst:
                    if nks == 0: rds += self.readP(pbuf(ns), ns % 4, "PF%d" % ns)
                    for t in range(NT): rds += self.readW(role, ns, nks, t, wbuf(ns, nks) + 4 * t)
                rpg = self.c["rpg"]
                if nks == 0 and rpg < 3: rpg = 3
                if D >= 3 and ks == 2 and rpg < 4: rpg = 4
                G = self.c["wgrp"]
                atoms = []
                for t in range(NT):
                    a = []
                    if t % G == 0:
                        w = ["F%d_%d_%d" % (s, ks, min(t + G - 1, NT - 1))]
                        if not (D >= 3 and ks == 3): a.append(I("WAITLG " + " ".join(w)))
                    a.append(mfma(s, ks, t, wbuf(s, ks) + 4 * t, pbuf(s) + 4 * ks))
                    k = rpg if t < NT - 1 else len(rds)
                    a += rds[:k]; rds = rds[k:]
                    atoms.append(a)
                left = {3: 4, 0: 3, 1: 2, 2: 1}[ks]
                if self.c["fillfrac"] < 100: left = max(1, left - 1)
                k = -(-len(carry) // left)
                mine, carry = carry[:k], carry[k:]
                atoms = interleave(atoms, mine)
                ex = extra_comp(s, ks)
                if ex: atoms = interleave(atoms, ex, 1 if len(atoms) > 1 else 0)
                for a in atoms: P(a)
        for a in carry: P(a)

    def nonce_store(self, P):
        P("s_or_b32 s%d, s2, s%d\ns_cmp_lg_u32 s%d, 0\ns_cbranch_scc1 L_nonce" % (sT0, sW, sT0))
        o = "nonce"
        d = SRD["dbg"]
        P("s_memrealtime s[%d:%d]\ns_waitcnt lgkmcnt(0)" % (sNONCE, sNONCE + 1), opt=o)
        P("s_or_b32 s%d, s%d, 1" % (sFLO, sNONCE), opt=o)
        P("s_atomic_add s%d, s[%d:%d], 0" % (sFLO, d, d + 1), opt=o)
        P("L_nonce:")

    def nonce_load(self):
        d = SRD["dbg"]
        return [I("s_load_dword s%d, s[%d:%d], 0" % (sNONCE, d, d + 1))]

    def nonce_get(self, role):
        lab = "ng" + role
        a = [I("s_waitcnt lgkmcnt(0)"), I("s_cmp_lg_u32 s%d, 0" % sNONCE), I("s_cbranch_scc1 L_%s1" % lab)]
        b = ["s_mov_b32 s%d, %d" % (sSPIN, self.c["spin"]), "L_%s0:" % lab,
             "buffer_load_dword v%d, v%d, %s, 0 offen sc1" % (vFL, vZ, srd("dbg")), "s_waitcnt vmcnt(0)",
             "v_readfirstlane_b32 s%d, v%d" % (sNONCE, vFL),
             "s_cmp_lg_u32 s%d, 0" % sNONCE, "s_cbranch_scc1 L_%s1" % lab,
             "s_sub_u32 s%d, s%d, 1" % (sSPIN, sSPIN), "s_cmp_lg_u32 s%d, 0" % sSPIN, "s_cbranch_scc1 L_%s0" % lab]
        a += [I(x, opt=lab) for x in b]
        a.append(I("L_%s1:" % lab))
        return a

    def tlb_touch(self, P, items):
        if not self.c["tlb"]: return
        for tensor, sreg in items:
            d = SRD[tensor]
            P("s_load_dword s%d, s[%d:%d], s%d" % (sDUM, d, d + 1, sreg))

    def p_off(self, role):
        a = lines("s_lshl_b32 s%d, s%d, 2\ns_add_u32 s%d, s%d, s%d\ns_lshl_b32 s%d, s%d, 5" % (sT0, sBQ, sT0, sT0, sW, sT0, sT0))
        a += lines("s_lshl_b32 s%d, s%d, 2\ns_add_u32 s%d, s%d, s%d" % (sT1, sXCD, sT0, sT0, sT1))
        if role == "A": a += lines("s_add_u32 s%d, s%d, s%d" % (sT0, sT0, sQ))
        a += lines("s_mul_i32 s%d, s%d, 3072" % (sT0, sT0))
        return a

    def roleA(self, P):
        c = self.c
        vQ, vS = 64, 32
        aW, aX, aK = 0, 64, 96
        P("s_lshl_b32 s%d, s%d, 2\ns_add_u32 s%d, s%d, s%d" % (sT0, sXCD, sT0, sT0, sQ))
        P("s_lshl_b32 s%d, s%d, 2\ns_add_u32 s%d, s%d, s%d" % (sT1, sBQ, sT1, sT1, sW))
        if c.get("same"): P("s_mov_b32 s%d, 0\ns_mov_b32 s%d, s%d" % (sT0, sT1, sW))
        P("s_mul_i32 s%d, s%d, 384\ns_mul_i32 s%d, s%d, %d\ns_add_u32 s%d, s%d, s%d" % (sWO_, sT0, sT2, sW, 16 * 12288, sWO_, sWO_, sT2))
        P("s_mul_i32 s%d, s%d, %d" % (sPO_, sT1, 32 * 1280))
        P("s_lshl_b32 s%d, s%d, 5\ns_add_u32 s%d, s%d, s%d\ns_mul_i32 s%d, s%d, 12288" % (sKO, sT1, sKO, sKO, sT0, sKO, sKO))
        P("s_mul_i32 s%d, s%d, 6144" % (sWM, sW))
        if c["rot"]:
            P("s_add_u32 s%d, s%d, s%d" % (sT0, sBQ, sQ))
            for k in range(6):
                P("s_add_u32 s%d, s%d, %d\ns_and_b32 s%d, s%d, %d" % (sT1, sT0, k, sT1, sT1, 3 if k < 4 else 1))
                P("s_mul_i32 s%d, s%d, %d\ns_add_u32 s%d, s%d, s%d" % (sRW[k], sT1, 64 * 12288, sRW[k], sRW[k], sWO_))
                P("s_lshl_b32 s%d, s%d, 7\ns_add_u32 s%d, s%d, s%d" % (sRP[k], sT1, sRP[k], sRP[k], sPO_))
        self.tabW(P, "A")
        self.tab128(P, [(vDP, 1280)])
        self.srds(P)
        tp = self.touch_plan("A")
        for g in tp.get(-1, []): P(self.touch(*g))
        def dma_stage(s):
            if c["rot"]:
                k = s % 4 if s < 8 else s - 4
                s0 = s - s % 4
                return self.dmaP("x", vDP, sRP[k], 128 * s0, s % 4, "S%d" % s) + self.dmaW("A", s, sRW[k], s0 * 64 * 12288)
            return self.dmaP("x", vDP, sPO_, 128 * s, s % 4, "S%d" % s) + self.dmaW("A", s, sWO_, s * 64 * 12288)
        for s in range(c["depth"]):
            for a in dma_stage(s): P(a)
        self.nonce_store(P)
        P(self.p_off("A"))
        P("s_and_b32 s%d, s%d, 15\ns_lshl_b32 s%d, s%d, 2\ns_add_u32 s%d, s%d, s%d\ns_mul_i32 s%d, s%d, %d\ns_add_u32 s%d, s%d, %d" %
          (sT1, sI, sT1, sT1, sT1, sT1, sW, sT1, sT1, 8 * SLAB, sT1, sT1, WS_PART))
        self.tlb_touch(P, [("k", sKO), ("ws", sT0), ("ws", sT1), ("out", sPO_)])
        self.tabR(P, "A")
        self.tab128(P, [(vDK, 384)])
        def mfma(s, ks, t, w, p):
            cs = "0" if (s == 0 and ks == 0) else vr(vQ + 16 * t, 16)
            return I("%s %s, %s, %s, %s" % (MF, vr(vQ + 16 * t, 16), ar(w), ar(p), cs))
        kp = c["kpos"]
        def extra_fill(s):
            f = [self.touch(*g) for g in tp.get(s, [])]
            if s == c["chkA"]: f.append(self.nonce_load())
            if c["depth"] >= 3:
                if s == 7: f += self.dmaP("k", vDK, sKO, 0, 2, "K0")
                if s == 8: f += self.dmaP("k", vDK, sKO, 128, 3, "K1")
            elif s == 8: f += self.dmaP("k", vDK, sKO, 0, 2, "K0") + self.dmaP("k", vDK, sKO, 128, 3, "K1")
            if s == 9: f += self.dmaP("k", vDK, sKO, 256, 0, "K2")
            return f
        self.stages(P, "A", 10, 6, dma_stage, mfma, aW, aX, extra_fill, lambda s, ks: [])
        self.stamp(P)
        P(self.nonce_get("A"))
        for g in range(3): P("v_mov_b32 v%d, s%d" % (52 + 4 * g + 3, sNONCE))
        for a, sl in enumerate((2, 3, 0)):
            P("WAITVM K%d" % a)
            P(self.readP(aK + 16 * a, sl, "KF%d" % a))
            for t in (2 * a, 2 * a + 1):
                q = vQ + 16 * t
                for i in range(8):
                    P("v_cvt_pk_bf16_f32 v%d, v%d, v%d" % (q + i, q + 2 * i, q + 2 * i + 1))
            P("WAITLG KF%d" % a)
            for jj in range(4):
                j = 4 * a + jj
                cs = "0" if j == 0 else vr(vS, 16)
                P("%s %s, %s, %s, %s" % (MF, vr(vS, 16), ar(aK + 4 * j), vr(vQ + 16 * (j // 2) + 4 * (j % 2)), cs))
        P(self.p_off("A"))
        P("s_mov_b32 s%d, s%d" % (sT2, sT0))
        self.stamp(P)
        self.softmax(P, vS)
        for g in range(3):
            P("buffer_store_dwordx4 %s, v%d, %s, s%d offen offset:%d %s" % (vr(52 + 4 * g), vL16, srd("ws"), sT2, WS_P + 1024 * g, c["stfl"]))
        self.stamp(P)
        self.reduce(P)

    def softmax(self, P, R):
        m, m2, Q = 48, 49, 64
        PB = [52, 53, 54, 60, 56, 57, 58, 61]
        P("v_max3_f32 v%d, v%d, v%d, v%d" % (m, R, R + 1, R + 2))
        P("v_max3_f32 v%d, v%d, v%d, v%d" % (m2, R + 3, R + 4, R + 5))
        for i in range(6, 14, 4):
            P("v_max3_f32 v%d, v%d, v%d, v%d" % (m, m, R + i, R + i + 1))
            P("v_max3_f32 v%d, v%d, v%d, v%d" % (m2, m2, R + i + 2, R + i + 3))
        P("v_max3_f32 v%d, v%d, v%d, v%d" % (m, m, R + 14, R + 15))
        P("v_max_f32 v%d, v%d, v%d" % (m, m, m2))
        P("v_mov_b32 v%d, v%d" % (m2, m))
        P("v_permlane32_swap_b32 v%d, v%d" % (m, m2))
        P("v_max_f32 v%d, v%d, v%d" % (m, m, m2))
        cval = struct.unpack("<I", struct.pack("<f", 192 ** -0.5 * math.log2(math.e)))[0]
        P("s_mov_b32 s%d, 0x%x" % (sT0, cval))
        P("v_mul_f32 v%d, s%d, v%d" % (m, sT0, m))
        for i in range(16):
            P("v_fma_f32 v%d, v%d, s%d, -v%d" % (R + i, R + i, sT0, m))
        for i in range(16):
            P("v_exp_f32 v%d, v%d" % (R + i, R + i))
        P("v_add_f32 v%d, v%d, v%d" % (Q, R, R + 1))
        P("v_add_f32 v%d, v%d, v%d" % (Q + 1, R + 2, R + 3))
        P("v_add_f32 v%d, v%d, v%d" % (Q + 2, R + 4, R + 5))
        P("v_add_f32 v%d, v%d, v%d" % (Q + 3, R + 6, R + 7))
        for i in range(8, 16):
            P("v_add_f32 v%d, v%d, v%d" % (Q + i % 4, Q + i % 4, R + i))
        P("v_add_f32 v%d, v%d, v%d" % (Q, Q, Q + 1))
        P("v_add_f32 v%d, v%d, v%d" % (Q + 2, Q + 2, Q + 3))
        P("v_add_f32 v%d, v%d, v%d" % (m, Q, Q + 2))
        P("v_mov_b32 v%d, v%d" % (m2, m))
        P("v_permlane32_swap_b32 v%d, v%d" % (m, m2))
        P("v_add_f32 v%d, v%d, v%d" % (m, m, m2))
        P("v_rcp_f32 v%d, v%d" % (m, m))
        for i in range(16):
            P("v_mul_f32 v%d, v%d, v%d" % (R + i, R + i, m))
        for i in range(8):
            P("v_cvt_pk_bf16_f32 v%d, v%d, v%d" % (PB[i], R + 2 * i, R + 2 * i + 1))

    def roleB(self, P):
        c = self.c
        vU = [64, 144]; vTMP = 32
        aW, aV, aU, aP = 0, 64, 96, 216
        P("s_lshl_b32 s%d, s%d, 2" % (sT0, sXCD))
        P("s_lshl_b32 s%d, s%d, 2\ns_add_u32 s%d, s%d, s%d" % (sT1, sBQ, sT1, sT1, sW))
        if c.get("same"): P("s_mov_b32 s%d, 0\ns_mov_b32 s%d, s%d" % (sT0, sT1, sW))
        P("s_mul_i32 s%d, s%d, 245760\ns_mul_i32 s%d, s%d, %d\ns_add_u32 s%d, s%d, s%d" % (sWO_, sT0, sT2, sW, 16 * 1280, sWO_, sWO_, sT2))
        P("s_mul_i32 s%d, s%d, 320\ns_add_u32 s%d, s%d, s%d" % (sT2, sQ, sWO_, sWO_, sT2))
        P("s_lshl_b32 s%d, s%d, 5\ns_add_u32 s%d, s%d, s%d\ns_mul_i32 s%d, s%d, 12288" % (sPO_, sT1, sPO_, sPO_, sT0, sPO_, sPO_))
        P("s_mul_i32 s%d, s%d, 5120" % (sWM, sW))
        if c["rot"]:
            P("s_add_u32 s%d, s%d, s%d" % (sT0, sBQ, sQ))
            for k in range(3):
                P("s_add_u32 s%d, s%d, %d\ns_mul_i32 s%d, s%d, 86\ns_lshr_b32 s%d, s%d, 8\ns_mul_i32 s%d, s%d, 3\ns_sub_u32 s%d, s%d, s%d" %
                  (sT1, sT0, k, sT2, sT1, sT2, sT2, sT2, sT2, sT1, sT1, sT2))
                P("s_mul_i32 s%d, s%d, %d\ns_add_u32 s%d, s%d, s%d" % (sRW[k], sT1, 64 * 1280, sRW[k], sRW[k], sWO_))
                P("s_lshl_b32 s%d, s%d, 7\ns_add_u32 s%d, s%d, s%d" % (sRP[k], sT1, sRP[k], sRP[k], sPO_))
        self.tabW(P, "B")
        self.tab128(P, [(vDP, 384)])
        self.srds(P)
        tp = self.touch_plan("B")
        if c["bdelay"]: P("s_sleep %d" % c["bdelay"])
        for g in tp.get(-1, []): P(self.touch(*g))
        def dma_stage(s):
            h, a = divmod(s, 3)
            if c["rot"]:
                return self.dmaP("v", vDP, sRP[a], h * 12288, s % 4, "S%d" % s) + self.dmaW("B", s, sRW[a], h * 192 * 1280)
            return self.dmaP("v", vDP, sPO_, h * 12288 + 128 * a, s % 4, "S%d" % s) + self.dmaW("B", s, sWO_, s * 64 * 1280)
        for s in range(c["depth"]):
            for a in dma_stage(s): P(a)
        P("s_and_b32 s%d, s%d, 15\ns_lshl_b32 s%d, s%d, 3\ns_add_u32 s%d, s%d, s%d" % (sPST, sI, sPST, sPST, sPST, sPST, sXCD))
        P("s_lshl_b32 s%d, s%d, 2\ns_add_u32 s%d, s%d, s%d\ns_mul_i32 s%d, s%d, %d\ns_add_u32 s%d, s%d, %d" % (sPST, sPST, sPST, sPST, sW, sPST, sPST, SLAB, sPST, sPST, WS_PART))
        P(self.p_off("B"))
        self.tlb_touch(P, [("ws", sT0), ("ws", sPST)])
        self.tabR(P, "B")
        def mfma(s, ks, t, w, p):
            u = vU[(s // 3) % 2] + 16 * t
            cs = "0" if (s % 3 == 0 and ks == 0) else vr(u, 16)
            return I("%s %s, %s, %s, %s" % (MF, vr(u, 16), ar(p), ar(w), cs))
        def extra_fill(s):
            f = [self.touch(*g) for g in tp.get(s, [])]
            if s == c["chkB"]: f.append(self.nonce_load())
            if s == c["preP"]:
                f.append(self.p_off("A") + lines("v_lshlrev_b32 v%d, 7, v%d\ns_mov_b64 exec, 0xffffff" % (vT[0], vLANE)) +
                         [I("buffer_load_dword a255, v%d, %s, s%d offen" % (vT[0], srd("ws"), sT0), tag="TCH"), I("s_mov_b64 exec, -1")])
            if s == c["preS"]:
                f.append(lines("v_lshlrev_b32 v%d, 7, v%d\ns_add_u32 s%d, s%d, 6144" % (vT[0], vLANE, sT0, sPST)) +
                         [I("buffer_load_dword a255, v%d, %s, s%d offen" % (vT[0], srd("ws"), sPST), tag="TCH"),
                          I("buffer_load_dword a255, v%d, %s, s%d offen" % (vT[0], srd("ws"), sT0), tag="TCH")])
            return f
        def extra_comp(s, ks):
            h, a = divmod(s, 3)
            if h == 0: return []
            n = 4 * a + ks - 1
            if n < 0 or n >= 10: return []
            t, half = divmod(n, 2)
            u = vU[(h - 1) % 2] + 16 * t + 8 * half
            r = []
            for i in range(4):
                r.append([I("v_cvt_pk_bf16_f32 v%d, v%d, v%d" % (vTMP + (4 * n + i) % 8, u + 2 * i, u + 2 * i + 1)),
                          I("v_accvgpr_write_b32 a%d, v%d" % (aU + 40 * (h - 1) + 8 * t + 4 * half + i, vTMP + (4 * n + i) % 8))])
            return r
        self.stages(P, "B", 12, 5, dma_stage, mfma, aW, aV, extra_fill, extra_comp)
        self.stamp(P)
        P(self.nonce_get("B"))
        P(self.p_off("B"))
        vP, vP2 = 224, 40
        def ploads():
            for h in range(4):
                so = sSOFF[h]
                for g in range(3):
                    d = vP + 8 * h + 4 * g if g < 2 else vP2 + 4 * h
                    P(I("buffer_load_dwordx4 %s, v%d, %s, s%d offen offset:%d %s" % (vr(d), vL16, srd("ws"), so, WS_P + 1024 * g, c["pollfl"]), tag="PL%d" % h))
        for h in range(4): P("s_add_u32 s%d, s%d, %d" % (sSOFF[h], sT0, 3072 * h))
        P("s_mov_b32 s%d, %d" % (sSPIN, c["spin"]))
        if c["pdelay"]: P("s_sleep %d" % c["pdelay"])
        ploads()
        u3 = vU[1]
        for t in range(5):
            for i in range(8):
                P("v_cvt_pk_bf16_f32 v%d, v%d, v%d" % (u3 + 16 * t + i, u3 + 16 * t + 2 * i, u3 + 16 * t + 2 * i + 1))
        GR = [32, 36, 56, 60] + [u3 + 16 * t + 8 + 4 * k for t in range(5) for k in range(2)]
        for g in range(14): P("v_mov_b32 v%d, s%d" % (GR[g] + 3, sNONCE))
        self.stamp(P)
        P("s_branch L_pl2")
        P("L_pl0:")
        ploads()
        P("L_pl2:")
        t0, t1 = vT[0], vT[1]
        P("s_waitcnt vmcnt(0)")
        tags = [vP + 8 * h + 4 * g + 3 for h in range(4) for g in range(2)] + [vP2 + 4 * h + 3 for h in range(4)]
        P("v_min3_u32 v%d, v%d, v%d, v%d" % (t0, tags[0], tags[1], tags[2]))
        P("v_max3_u32 v%d, v%d, v%d, v%d" % (t1, tags[0], tags[1], tags[2]))
        for i in range(3, 11, 2):
            P("v_min3_u32 v%d, v%d, v%d, v%d" % (t0, t0, tags[i], tags[i + 1]))
            P("v_max3_u32 v%d, v%d, v%d, v%d" % (t1, t1, tags[i], tags[i + 1]))
        P("v_min3_u32 v%d, v%d, v%d, s%d" % (t0, t0, tags[11], sNONCE))
        P("v_max3_u32 v%d, v%d, v%d, s%d" % (t1, t1, tags[11], sNONCE))
        P("v_cmp_ne_u32 vcc, v%d, v%d" % (t0, t1))
        P("s_nop 1\ns_cbranch_vccz L_pl1")
        P("s_sub_u32 s%d, s%d, 1\ns_cmp_lg_u32 s%d, 0\ns_cbranch_scc1 L_pl0" % (sSPIN, sSPIN, sSPIN))
        P("L_pl1:")
        for h in range(4):
            for m in range(2):
                P("v_mov_b32 v%d, v%d" % (vP + 8 * h + 4 * m + 3, vP2 + 4 * h + m))
        self.stamp(P)
        vO = vU[0]
        fl = c["stfl"]
        def pu(t):
            r = []
            for h in range(4):
                for m in range(2):
                    ua = ar(aU + 40 * h + 8 * t + 4 * m) if h < 3 else vr(u3 + 16 * t + 4 * m)
                    cs = "0" if (h == 0 and m == 0) else vr(vO + 16 * t, 16)
                    r.append([I("%s %s, %s, %s, %s" % (MF, vr(vO + 16 * t, 16), ua, vr(vP + 8 * h + 4 * m), cs))])
            return r
        for k in range(4): P("s_add_u32 s%d, s%d, %d" % (sSOFF[k], sPST, 4096 * k))
        def fin(t):
            o = vO + 16 * t
            r = []
            for i in range(8):
                j = 8 * t + i
                g = j // 3
                a = [I("v_cvt_pk_bf16_f32 v%d, v%d, v%d" % (GR[g] + j % 3, o + 2 * i, o + 2 * i + 1))]
                if j % 3 == 2 or j == 39:
                    a.append(I("buffer_store_dwordx4 %s, v%d, %s, s%d offen offset:%d %s" % (vr(GR[g]), vL16, srd("ws"), sSOFF[g // 4], 1024 * (g % 4), fl), tag="OST"))
                r.append(a)
            return r
        for t in range(5):
            at = pu(t)
            if t: at = interleave(at, fin(t - 1), 3, 8)
            for a in at: P(a)
        for a in fin(4): P(a)
        self.stamp(P)

    def reduce(self, P):
        c = self.c
        T, b = 2, 3
        ln = vLANE
        P("v_and_b32 v%d, 0x13, v%d" % (T, ln))
        P("v_and_b32 v%d, 4, v%d" % (b, ln))
        P("v_lshl_or_b32 v%d, v%d, 1, v%d" % (T, b, T))
        P("v_and_b32 v%d, 8, v%d" % (b, ln))
        P("v_lshrrev_b32 v%d, 1, v%d" % (b, b))
        P("v_or_b32 v%d, v%d, v%d" % (T, T, b))
        P("v_mul_u32_u24 v%d, 1280, v%d" % (T, T))
        P("v_lshrrev_b32 v%d, 5, v%d" % (b, ln))
        P("v_mul_u32_u24 v%d, 160, v%d" % (b, b))
        P("v_add_u32 v%d, v%d, v%d" % (b, b, T))
        so, sg, sb = sSOFF[0], sSOFF[1], sSOFF[2]
        P("s_lshl_b32 s%d, s%d, 2\ns_add_u32 s%d, s%d, s%d\ns_mul_i32 s%d, s%d, %d" % (so, sBQ, so, so, sW, so, so, 32 * 1280))
        P("s_mul_i32 s%d, s%d, 320\ns_add_u32 s%d, s%d, s%d" % (sT1, sQ, so, so, sT1))
        P("s_and_b32 s%d, s%d, 15\ns_lshl_b32 s%d, s%d, 5\ns_add_u32 s%d, s%d, s%d\ns_mul_i32 s%d, s%d, %d\ns_add_u32 s%d, s%d, %d" %
          (sb, sI, sb, sb, sb, sb, sW, sb, sb, SLAB, sb, sb, WS_PART))
        ld = c["pollfl"]
        cn = 4
        P("v_and_b32 v%d, 7, v%d\nv_mul_u32_u24 v%d, %d, v%d\nv_add_u32 v%d, 1020, v%d" % (cn, ln, cn, 4 * SLAB, cn, cn, cn))
        sE, sL = sg, sSOFF[3]
        P("s_lshl_b32 s%d, s%d, 10\ns_add_u32 s%d, s%d, s%d\ns_add_u32 s%d, s%d, 6144" % (sE, sXCD, sE, sE, sb, sL, sE))
        P("s_mul_i32 s%d, s%d, 12\ns_add_u32 s%d, s%d, s%d" % (sT1, sXCD, so, so, sT1))
        def canary(lab, sbase):
            P("s_mov_b32 s%d, %d" % (sSPIN, c["spin"]))
            P("L_%s0:" % lab)
            P("buffer_load_dword v8, v%d, %s, s%d offen %s\ns_waitcnt vmcnt(0)" % (cn, srd("ws"), sbase, ld))
            P("v_cmp_ne_u32 vcc, s%d, v8\ns_nop 1\ns_cbranch_vccz L_%s1" % (sNONCE, lab))
            if c["asleep"]: P("s_sleep %d" % c["asleep"])
            P("s_sub_u32 s%d, s%d, 1\ns_cmp_lg_u32 s%d, 0\ns_cbranch_scc1 L_%s0" % (sSPIN, sSPIN, sSPIN, lab))
            P("L_%s1:" % lab)
        def loads(D, sbase, tag):
            P("s_mov_b32 s%d, s%d" % (sT1, sbase))
            for x in range(8):
                P(I("buffer_load_dwordx4 %s, v%d, %s, s%d offen %s" % (vr(D + 4 * x), vL16, srd("ws"), sT1, ld), tag="%s%d" % (tag, x)))
                if x < 7: P("s_add_u32 s%d, s%d, %d" % (sT1, sT1, 4 * SLAB))
        def summ(lab, D, E, sbase, tag):
            P("s_mov_b32 s%d, %d" % (sSPIN, c["spin"]))
            P("L_%s0:" % lab)
            for x in range(8):
                if tag: P("WAITVM %s%d" % (tag, x))
                d = D + 4 * x
                e = E if x == 0 else E + 6
                for i in range(3):
                    P("v_lshlrev_b32 v%d, 16, v%d" % (e + 2 * i, d + i))
                    P("v_and_b32 v%d, 0xffff0000, v%d" % (e + 2 * i + 1, d + i))
                if x == 0:
                    P("v_xor_b32 v8, s%d, v%d" % (sNONCE, d + 3))
                else:
                    P("v_xor_b32 v9, s%d, v%d" % (sNONCE, d + 3))
                    for i in range(0, 6, 2):
                        P("v_pk_add_f32 v[%d:%d], v[%d:%d], v[%d:%d]" % (E + i, E + i + 1, E + i, E + i + 1, e + i, e + i + 1))
                    P("v_or_b32 v8, v8, v9")
            P("v_cmp_ne_u32 vcc, 0, v8")
            for i in range(3):
                P("v_cvt_pk_bf16_f32 v%d, v%d, v%d" % (E + 12 + i, E + 2 * i, E + 2 * i + 1))
            P("s_cbranch_vccz L_%s1" % lab)
            Q = Prog()
            P_save = P
            n0 = len(P.ins)
            loads(D, sbase, "zz")
            P("s_waitcnt vmcnt(0)")
            P("s_sub_u32 s%d, s%d, 1\ns_cmp_lg_u32 s%d, 0\ns_cbranch_scc1 L_%s0" % (sSPIN, sSPIN, sSPIN, lab))
            for x in P.ins[n0:]: x.opt = lab
            P("L_%s1:" % lab)
        P("s_cmp_ge_u32 s%d, 6\ns_cbranch_scc1 L_rne" % sXCD)
        n0 = len(P.ins)
        canary("ce", sE)
        loads(64, sE, "RE")
        for x in P.ins[n0:]: x.opt = "early"
        P("L_rne:")
        self.stamp(P)
        canary("cl", sL)
        self.stamp(P)
        loads(96, sL, "RL")
        P("s_cmp_ge_u32 s%d, 6\ns_cbranch_scc1 L_rne2" % sXCD)
        n0 = len(P.ins)
        summ("se", 64, 128, sE, None)
        for x in P.ins[n0:]:
            if not x.opt: x.opt = "early2"
        P("L_rne2:")
        summ("sl", 96, 144, sL, "RL")
        P("s_cmp_eq_u32 s%d, 7\ns_cbranch_scc1 L_r13" % sXCD)
        P("buffer_store_dwordx3 v[156:158], v%d, %s, s%d offen offset:72" % (b, srd("out"), so))
        P("s_cmp_eq_u32 s%d, 6\ns_cbranch_scc1 L_rdone" % sXCD)
        P("buffer_store_dwordx3 v[140:142], v%d, %s, s%d offen" % (b, srd("out"), so))
        P("s_branch L_rdone")
        P("L_r13:")
        P("buffer_store_dword v156, v%d, %s, s%d offen offset:72" % (b, srd("out"), so))
        P("L_rdone:")
        self.stamp(P)

    def fin(self, P):
        if self.c.get("nomfma"):
            P.ins = [x for x in P.ins if not x.txt.startswith("v_mfma")]
        return P.finalize()

    def main_kernel(self):
        P0 = Prog(); self.prologue(P0, "L_end")
        P0("s_cmp_ge_u32 s%d, 16\ns_cbranch_scc1 L_roleB" % sI)
        n0 = self.nst
        txt = self.fin(P0)
        for role in "AB":
            P = Prog(); self.nst = n0
            if role == "B": P("L_roleB:")
            (self.roleA if role == "A" else self.roleB)(P)
            self.dump_stamps(P, 0)
            if role == "A": P("s_endpgm")
            txt += self.fin(P)
        txt += "L_end:\n    s_endpgm\n"
        return txt

    def build(self):
        c = self.c
        ks = [(NAME + "_kernel", self.main_kernel, 512, 163840)]
        txt = HDR
        if len(ks) == 1:
            txt += "; @launch grid=(256,1,1) block=(256,1,1) lds=163840\n"
        else:
            for (lab, _, _, lds) in ks:
                txt += "; @launch kernel=%s grid=(256,1,1) block=(256,1,1) lds=%d\n" % (lab, lds)
        txt += '.amdgcn_target "amdgcn-amd-amdhsa--gfx950"\n.text\n'
        kds = ""
        for (lab, body, vg, _) in ks:
            txt += ".globl %s\n.p2align 8\n.type %s,@function\n%s:\n" % (lab, lab, lab) + body()
            acc = 256 if vg > 256 else vg
            kds += (".p2align 6\n.amdhsa_kernel %s\n  .amdhsa_next_free_vgpr %d\n  .amdhsa_next_free_sgpr 102\n  .amdhsa_accum_offset %d\n"
                    "  .amdhsa_group_segment_fixed_size 0\n  .amdhsa_kernarg_size 64\n  .amdhsa_user_sgpr_count 2\n"
                    "  .amdhsa_user_sgpr_kernarg_segment_ptr 1\n  .amdhsa_system_sgpr_workgroup_id_x 1\n.end_amdhsa_kernel\n") % (lab, vg, acc)
        txt += '.section .rodata,"a"\n' + kds
        return txt

if __name__ == "__main__":
    out = sys.argv[1]
    kw = {}
    for a in sys.argv[2:]:
        k, v = a.split("=", 1)
        kw[k] = int(v) if v.lstrip("-").isdigit() else v
    open(out, "w").write(Gen(**kw).build())
```

```python
import sys, math, struct
from asmlib import *

NAME = "standalone__gqa_block_cached__near_ridge"
HDR = open("cdna_kernels/%s.s.ref" % NAME).read().split("; Override launch")[0]

DEF = dict(mode="h2", stamps=0, spin=20000, depth=2,
           tA="", tB="", ststage=0, rot=1, rpg=2, wgrp=1, sent=1, pollfl="sc1", stfl="sc1", apoll=1, asleep=0, clrpos=1, chkA=7, chkB=9, kpos=8, bdelay=0, fillfrac=100)

sW, sXCD, sI, sQ, sBQ = 3, 4, 5, 6, 7
sPB = 8
sWO_, sPO_, sKO = 9, 10, 11
sWM = 12
sT0, sT1, sT2 = 13, 14, 15
sNONCE, sSPIN, sFLO, sJ = 16, 17, 18, 19
sPST = sKO
SRD = dict(x=32, k=36, v=40, wq=44, wo=48, out=52, ws=56, dbg=60)
KOFF = dict(x=0, k=8, v=16, wq=24, wo=32, out=40, dbg=48, ws=56)
PTR = dict(x=16, k=18, v=20, wq=22, wo=24, out=26, dbg=28, ws=30)
SIZE = dict(x=655360, k=6291456, v=6291456, wq=7864320, wo=7864320, out=655360, dbg=256, ws=268435456)
sRW = [20, 21, 22, 23, 24, 25]
sRP = [26, 27, 28, 29, 30, 31]
sSOFF = [64, 65, 66, 67]
sSTAMP = 70
vZ = 0
vLANE = 1
vDW = [2, 3, 4, 5, 6, 7]
vDP = [8, 9, 10, 11]
vDK = [12, 13, 14, 15]
vRP = [16, 17, 18, 19]
vRT = [20, 21, 22, 23]
vL16 = 24
vT = [25, 26, 27]
vFL = 28
WS_P = 0
WS_PART = 1 << 20
WS_FLAG = 16 << 20
WS_FLAG2 = WS_FLAG + (1 << 16)
WS_STAMP = 32 << 20
NSLOT = 4
SLOT = 24576
PRIV0 = NSLOT * SLOT
MF = "v_mfma_f32_32x32x16_bf16"

def srd(n): return "s[%d:%d]" % (SRD[n], SRD[n] + 3)
def vr(b, n=4): return "v[%d:%d]" % (b, b + n - 1)
def ar(b, n=4): return "a[%d:%d]" % (b, b + n - 1)
def lines(x): return [I(l) for l in x.split("\n") if l.strip()]

class Gen:
    def __init__(self, **kw):
        self.c = dict(DEF); self.c.update(kw)
        self.nst = 0; self.soffi = 0

    def nsoff(self):
        s = sSOFF[self.soffi % len(sSOFF)]; self.soffi += 1
        return s

    def stamp_i(self):
        if not self.c["stamps"]: return []
        r = sSTAMP + 2 * self.nst; self.nst += 1
        if r + 1 > 101: return []
        return [I("%s s[%d:%d]" % ("s_memrealtime" if self.c["stamps"] == 2 else "s_memtime", r, r + 1))]
    def stamp(self, P): P(self.stamp_i())

    def dump_stamps(self, P, kidx):
        if not self.c["stamps"]: return
        P("s_waitcnt lgkmcnt(0)")
        P("s_lshl_b32 s%d, s2, 2" % sT0)
        P("s_add_u32 s%d, s%d, s%d" % (sT0, sT0, sW))
        P("s_lshl_b32 s%d, s%d, 8" % (sT0, sT0))
        P("s_add_u32 s%d, s%d, %d" % (sT0, sT0, WS_STAMP + (kidx << 20)))
        P("s_mov_b64 exec, 1")
        P("v_mov_b32 v2, 0")
        for i in range(16):
            P("v_mov_b32 v4, s%d\nv_mov_b32 v5, s%d" % (sSTAMP + 2 * i, sSTAMP + 2 * i + 1))
            P("buffer_store_dwordx2 v[4:5], v2, %s, s%d offen offset:%d" % (srd("ws"), sT0, 8 * i))
            P("s_nop 1")
        P("s_memrealtime s[%d:%d]\ns_waitcnt lgkmcnt(0)" % (sSTAMP, sSTAMP + 1))
        P("v_mov_b32 v4, s%d\nv_mov_b32 v5, s%d" % (sSTAMP, sSTAMP + 1))
        P("buffer_store_dwordx2 v[4:5], v2, %s, s%d offen offset:248" % (srd("ws"), sT0))
        P("s_nop 1")
        P("v_mov_b32 v4, s68\nv_mov_b32 v5, s69")
        P("buffer_store_dwordx2 v[4:5], v2, %s, s%d offen offset:240" % (srd("ws"), sT0))

    def prologue(self, P, lend):
        self.nst = 0
        if self.c["stamps"]:
            for r in range(sSTAMP, 102, 2): P("s_mov_b64 s[%d:%d], 0" % (r, r + 1))
            P("s_memrealtime s[68:69]")
        self.stamp(P)
        P("s_cmp_ge_u32 s2, 256\ns_cbranch_scc1 %s" % lend)
        for n in ("wq", "x", "wo", "v", "ws", "k", "dbg", "out"):
            P("s_load_dwordx2 s[%d:%d], s[0:1], %d" % (SRD[n], SRD[n] + 1, KOFF[n]))
        P("v_lshrrev_b32 v2, 6, v0")
        P("v_and_b32 v%d, 63, v0" % vLANE)
        P("v_readfirstlane_b32 s%d, v2" % sW)
        P("s_and_b32 s%d, s2, 7" % sXCD)
        P("s_lshr_b32 s%d, s2, 3" % sI)
        P("s_and_b32 s%d, s%d, 3" % (sQ, sI))
        P("s_bfe_u32 s%d, s%d, 0x20002" % (sBQ, sI))
        P("s_lshl_b32 s%d, s%d, 14\ns_add_u32 s%d, s%d, %d" % (sPB, sW, sPB, sPB, PRIV0))
        P("v_mov_b32 v%d, 0" % vZ)
        P("v_lshlrev_b32 v%d, 4, v%d" % (vL16, vLANE))

    def srds(self, P):
        for n in SRD:
            b = SRD[n]
            P("s_mov_b32 s%d, %d\ns_mov_b32 s%d, 0x20000" % (b + 2, SIZE[n], b + 3))
        P("s_and_b32 s%d, s%d, 15\ns_lshl_b32 s%d, s%d, 2\ns_add_u32 s%d, s%d, s%d" % (sJ, sI, sJ, sJ, sJ, sJ, sW))
        P("s_waitcnt lgkmcnt(0)")
        self.stamp(P)

    def tab128(self, P, tabs):
        t0, t1, t2 = vT; L = vLANE
        P("v_lshrrev_b32 v%d, 3, v%d" % (t0, L))
        P("v_lshrrev_b32 v%d, 4, v%d" % (t1, L))
        P("v_xor_b32 v%d, v%d, v%d" % (t1, t1, L))
        P("v_and_b32 v%d, 7, v%d" % (t1, t1))
        P("v_lshlrev_b32 v%d, 4, v%d" % (t1, t1))
        P("v_xor_b32 v%d, 64, v%d" % (t2, t1))
        for regs, pitch in tabs:
            P("v_mul_u32_u24 v%d, %d, v%d" % (regs[3], pitch, t0))
            P("v_add_u32 v%d, v%d, v%d" % (regs[0], regs[3], t1))
            P("v_add_u32 v%d, v%d, v%d" % (regs[1], regs[3], t2))
            P("v_add_u32 v%d, %d, v%d" % (regs[2], 2 * (8 * pitch - 1024), regs[0]))
            P("v_add_u32 v%d, %d, v%d" % (regs[3], 3 * (8 * pitch - 1024), regs[1]))
            P("v_add_u32 v%d, %d, v%d" % (regs[1], 8 * pitch - 1024, regs[1]))

    def tabW(self, P, role):
        t0, t1, t2 = vT; L = vLANE
        if role == "A":
            for j in range(3):
                P("v_add_u32 v%d, %d, v%d" % (t0, 64 * j, L))
                P("v_mul_u32_u24 v%d, 2731, v%d" % (t1, t0))
                P("v_lshrrev_b32 v%d, 16, v%d" % (t1, t1))
                P("v_mul_u32_u24 v%d, 24, v%d" % (t2, t1))
                P("v_sub_u32 v%d, v%d, v%d" % (t0, t0, t2))
                P("v_and_b32 v%d, 2, v%d" % (t2, t1))
                P("v_lshlrev_b32 v%d, 1, v%d" % (t2, t2))
                P("v_xor_b32 v%d, v%d, v%d" % (t0, t0, t2))
                P("v_mul_u32_u24 v%d, 12288, v%d" % (t2, t1))
                P("v_lshl_add_u32 v%d, v%d, 4, v%d" % (t0, t0, t2))
                if j: P("v_subrev_u32 v%d, %d, v%d" % (t0, 1024 * j, t0))
                P("v_mov_b32 v%d, v%d" % (vDW[j], t0))
                P("v_add_u32 v%d, %d, v%d" % (vDW[j + 3], 8 * 12288, t0))
        else:
            for j in range(5):
                P("v_add_u32 v%d, %d, v%d" % (t0, 64 * j, L))
                P("v_mul_u32_u24 v%d, 3277, v%d" % (t1, t0))
                P("v_lshrrev_b32 v%d, 16, v%d" % (t1, t1))
                P("v_mul_u32_u24 v%d, 20, v%d" % (t2, t1))
                P("v_sub_u32 v%d, v%d, v%d" % (t0, t0, t2))
                P("v_mul_u32_u24 v%d, 1280, v%d" % (t2, t1))
                imm = 1024 * (j % 3)
                if imm: P("v_subrev_u32 v%d, %d, v%d" % (t2, imm, t2))
                P("v_lshl_add_u32 v%d, v%d, 4, v%d" % (vDW[j], t0, t2))

    def tabR(self, P, role):
        t0, t1, t2 = vT; L = vLANE
        P("v_and_b32 v%d, 0x13, v%d" % (t0, L))
        P("v_and_b32 v%d, 4, v%d" % (t1, L))
        P("v_lshl_or_b32 v%d, v%d, 1, v%d" % (t0, t1, t0))
        P("v_and_b32 v%d, 8, v%d" % (t1, L))
        P("v_lshrrev_b32 v%d, 1, v%d" % (t1, t1))
        P("v_or_b32 v%d, v%d, v%d" % (t0, t0, t1))
        P("v_lshrrev_b32 v%d, 1, v%d" % (t1, t0))
        P("v_and_b32 v%d, 7, v%d" % (t1, t1))
        P("v_lshrrev_b32 v%d, 5, v%d" % (t2, L))
        P("v_xor_b32 v%d, v%d, v%d" % (t1, t1, t2))
        P("v_lshlrev_b32 v%d, 4, v%d" % (t1, t1))
        P("v_lshl_add_u32 v%d, v%d, 7, v%d" % (t0, t0, t1))
        P("v_add_u32 v%d, s%d, v%d" % (vRP[0], sPB, t0))
        for jj in range(1, 4):
            P("v_xor_b32 v%d, %d, v%d" % (vRP[jj], 32 * jj, vRP[0]))
        pitch = 384 if role == "A" else 320
        P("v_lshrrev_b32 v%d, 2, v%d" % (t0, L))
        P("v_and_b32 v%d, 3, v%d" % (t0, t0))
        P("v_lshl_add_u32 v%d, v%d, 3, v%d" % (t0, t2, t0))
        P("v_mul_u32_u24 v%d, %d, v%d" % (t0, pitch, t0))
        P("v_and_b32 v%d, 1, v%d" % (t1, L))
        P("v_lshlrev_b32 v%d, 4, v%d" % (t1, t1))
        P("v_and_b32 v%d, 2, v%d" % (t2, L))
        P("v_lshl_or_b32 v%d, v%d, 2, v%d" % (t1, t2, t1))
        P("v_and_b32 v%d, 16, v%d" % (t2, L))
        P("v_lshl_or_b32 v%d, v%d, 1, v%d" % (t1, t2, t1))
        P("v_add_u32 v%d, v%d, v%d" % (t0, t0, t1))
        if role == "A":
            P("v_and_b32 v%d, 8, v%d" % (t1, L))
            P("v_lshl_add_u32 v%d, v%d, 3, v%d" % (vRT[0], t1, t0))
            P("v_xor_b32 v%d, 64, v%d" % (vRT[1], vRT[0]))
            P("v_add_u32 v%d, %d, v%d" % (vRT[2], 2 * SLOT, vRT[0]))
            P("v_add_u32 v%d, %d, v%d" % (vRT[3], 2 * SLOT, vRT[1]))
        else:
            P("v_mov_b32 v%d, v%d" % (vRT[0], t0))
            P("v_add_u32 v%d, %d, v%d" % (vRT[1], 2 * SLOT, t0))

    def dmaW(self, role, s, sbase, goff):
        so = self.nsoff()
        n = 6 if role == "A" else 5
        base = (s % NSLOT) * SLOT
        atoms = []
        for j in range(n):
            a = []
            if j == 0:
                a += [I("s_add_u32 m0, s%d, %d" % (sWM, base)), I("s_add_u32 s%d, s%d, %d" % (so, sbase, goff))]
            if j == 3:
                a += [I("s_add_u32 m0, s%d, %d" % (sWM, base + 3072))]
            a.append(I("buffer_load_dwordx4 v%d, %s, s%d offen offset:%d lds" % (vDW[j], srd("wq" if role == "A" else "wo"), so, 1024 * (j % 3)), tag="S%d" % s))
            atoms.append(a)
        return atoms

    def dmaP(self, tensor, regs, sbase, goff, pslot, tag):
        so = self.nsoff()
        atoms = []
        for j in range(4):
            a = []
            if j == 0:
                a += [I("s_add_u32 m0, s%d, %d" % (sPB, pslot * 4096)), I("s_add_u32 s%d, s%d, %d" % (so, sbase, goff))]
            a.append(I("buffer_load_dwordx4 v%d, %s, s%d offen offset:%d lds" % (regs[j], srd(tensor), so, 1024 * j), tag=tag))
            atoms.append(a)
        return atoms

    def readP(self, dst, pslot, tag):
        return [I("ds_read_b128 %s, v%d offset:%d" % (ar(dst + 4 * jj), vRP[jj], pslot * 4096), tag=tag) for jj in range(4)]

    def readW(self, role, s, ks, t, dst):
        slot = s % NSLOT
        hi, lo = slot // 2, slot % 2
        r = []
        for u in range(2):
            if role == "A":
                reg = vRT[2 * hi + (t & 1)]
                off = lo * SLOT + ks * 6144 + 4 * u * 384 + 64 * (t & ~1)
            else:
                reg = vRT[hi]
                off = lo * SLOT + ks * 5120 + 4 * u * 320 + 64 * t
            r.append(I("ds_read_b64_tr_b16 %s, v%d offset:%d" % (ar(dst + 2 * u, 2), reg, off), tag="F%d_%d_%d" % (s, ks, t)))
        return r

    def touch(self, role, g):
        t0, t1, t2 = vT
        a = []
        A = lambda x: a.extend(lines(x))
        def ld(tensor, n, so):
            if n > 32: A("s_mov_b32 exec_hi, 0x%x" % ((1 << (n - 32)) - 1))
            else: A("s_mov_b64 exec, 0x%x" % ((1 << n) - 1) if n < 32 else "s_mov_b32 exec_hi, 0")
            a.append(I("buffer_load_dword a255, v%d, %s, s%d offen" % (t0, srd(tensor), so), tag="TCH"))
            A("s_mov_b64 exec, -1")
        if role == "A":
            ns = 4 if g == 2 else 3
            s0 = 3 * g
            so = self.nsoff()
            A("v_mul_u32_u24 v%d, 5462, v%d\nv_lshrrev_b32 v%d, 16, v%d" % (t0, vLANE, t0, t0))
            A("v_mul_u32_u24 v%d, %d, v%d" % (t0, 12288 - 1536, t0))
            A("v_lshl_add_u32 v%d, v%d, 7, v%d" % (t0, vLANE, t0))
            A("s_mul_i32 s%d, s%d, %d\ns_mul_i32 s%d, s%d, 1536\ns_add_u32 s%d, s%d, s%d\ns_add_u32 s%d, s%d, %d" %
              (so, sJ, ns * 12288, sT0, sXCD, so, so, sT0, so, so, 64 * s0 * 12288))
            ld("wq", 12 * ns, so)
            so = self.nsoff()
            if ns == 3: A("v_mul_u32_u24 v%d, 21846, v%d\nv_lshrrev_b32 v%d, 16, v%d" % (t0, vLANE, t0, t0))
            else: A("v_lshrrev_b32 v%d, 2, v%d" % (t0, vLANE))
            A("v_mul_u32_u24 v%d, %d, v%d" % (t0, 1280 - 128 * ns, t0))
            A("v_lshl_add_u32 v%d, v%d, 7, v%d" % (t0, vLANE, t0))
            A("s_mul_i32 s%d, s%d, %d\ns_add_u32 s%d, s%d, %d" % (so, sJ, 8 * 1280, so, so, 128 * s0))
            ld("x", 8 * ns, so)
        elif role == "K":
            A("v_lshlrev_b32 v%d, 7, v%d" % (t0, vLANE))
            so = self.nsoff()
            A("s_lshr_b32 s%d, s%d, 2\ns_lshl_b32 s%d, s%d, 5\ns_and_b32 s%d, s%d, 3\ns_add_u32 s%d, s%d, s%d" % (so, sJ, so, so, sT0, sJ, so, so, sT0))
            A("s_lshl_b32 s%d, s%d, 2\ns_add_u32 s%d, s%d, s%d\ns_mul_i32 s%d, s%d, 12288\ns_add_u32 s%d, s%d, %d" % (sT0, sXCD, so, so, sT0, so, so, so, so, g * 6144))
            ld("k", 48, so)
        else:
            A("v_lshlrev_b32 v%d, 7, v%d" % (t0, vLANE))
            so = self.nsoff()
            A("s_mul_i32 s%d, s%d, 3840\ns_mul_i32 s%d, s%d, %d\ns_add_u32 s%d, s%d, s%d\ns_add_u32 s%d, s%d, %d" %
              (so, sJ, sT0, sXCD, 4 * 245760, so, so, sT0, so, so, g * 245760))
            ld("wo", 30, so)
            so = self.nsoff()
            A("s_lshr_b32 s%d, s%d, 2\ns_mul_i32 s%d, s%d, 393216\ns_and_b32 s%d, s%d, 3\ns_mul_i32 s%d, s%d, 3072\ns_add_u32 s%d, s%d, s%d" %
              (so, sJ, so, so, sT0, sJ, sT0, sT0, so, so, sT0))
            A("s_mul_i32 s%d, s%d, %d\ns_add_u32 s%d, s%d, s%d\ns_add_u32 s%d, s%d, %d" % (sT0, sXCD, 4 * 12288, so, so, sT0, so, so, g * 12288))
            ld("v", 24, so)
        return a

    def touch_plan(self, role):
        d = {}
        for e in self.c["t" + role].split(","):
            if e:
                g, s = e.split(":"); d.setdefault(int(s), []).append((g[0], int(g[1:])))
        return d

    def stages(self, P, role, nst, NT, dma_stage, mfma, aW, aP, extra_fill, extra_comp):
        D = self.c["depth"]
        wbuf = lambda s, ks: aW + 4 * NT * ((4 * s + ks) % 2)
        pbuf = lambda s: aP + 16 * (s % 2)
        P("WAITVM S0")
        P("s_barrier")
        self.stamp(P)
        P(self.readP(pbuf(0), 0, "PF0"))
        for t in range(NT): P(self.readW(role, 0, 0, t, wbuf(0, 0) + 4 * t))
        carry = []
        for s in range(nst):
            if s == 0:
                carry = extra_fill(0) + (dma_stage(D) if D < nst else [])
                span = 3
            for ks in range(4):
                if ks == 3:
                    for a in carry: P(a)
                    carry = []
                    if D >= 3: P("WAITLG F%d_3_%d" % (s, NT - 1))
                    if s + 1 < nst:
                        P("WAITVM S%d" % (s + 1))
                        P("s_barrier")
                        if self.c["ststage"]: self.stamp(P)
                        carry = extra_fill(s + 1) + (dma_stage(s + 1 + D) if s + 1 + D < nst else [])
                    else:
                        carry = extra_fill(s + 1)
                    span = 4
                ns, nks = (s, ks + 1) if ks < 3 else (s + 1, 0)
                rds = []
                if ns < nst:
                    if nks == 0: rds += self.readP(pbuf(ns), ns % 4, "PF%d" % ns)
                    for t in range(NT): rds += self.readW(role, ns, nks, t, wbuf(ns, nks) + 4 * t)
                rpg = self.c["rpg"]
                if nks == 0 and rpg < 3: rpg = 3
                if D >= 3 and ks == 2 and rpg < 4: rpg = 4
                G = self.c["wgrp"]
                atoms = []
                for t in range(NT):
                    a = []
                    if t % G == 0:
                        w = ["F%d_%d_%d" % (s, ks, min(t + G - 1, NT - 1))]
                        if not (D >= 3 and ks == 3): a.append(I("WAITLG " + " ".join(w)))
                    a.append(mfma(s, ks, t, wbuf(s, ks) + 4 * t, pbuf(s) + 4 * ks))
                    k = rpg if t < NT - 1 else len(rds)
                    a += rds[:k]; rds = rds[k:]
                    atoms.append(a)
                left = {3: 4, 0: 3, 1: 2, 2: 1}[ks]
                if self.c["fillfrac"] < 100: left = max(1, left - 1)
                k = -(-len(carry) // left)
                mine, carry = carry[:k], carry[k:]
                atoms = interleave(atoms, mine)
                ex = extra_comp(s, ks)
                if ex: atoms = interleave(atoms, ex, 1 if len(atoms) > 1 else 0)
                for a in atoms: P(a)
        for a in carry: P(a)

    def nonce_store(self, P):
        P("s_or_b32 s%d, s2, s%d\ns_cmp_lg_u32 s%d, 0\ns_cbranch_scc1 L_nonce" % (sT0, sW, sT0))
        o = "nonce"
        P("s_memrealtime s[%d:%d]\ns_waitcnt lgkmcnt(0)" % (sNONCE, sNONCE + 1), opt=o)
        P("s_or_b32 s%d, s%d, 1" % (sNONCE, sNONCE), opt=o)
        P("v_mov_b32 v%d, s%d" % (vFL, sNONCE), opt=o)
        P("s_mov_b64 exec, 1", opt=o)
        P("buffer_store_dword v%d, v%d, %s, 0 offen sc0 sc1" % (vFL, vZ, srd("dbg")), opt=o)
        P("s_mov_b64 exec, -1", opt=o)
        P("L_nonce:")

    def nonce_load(self):
        return [I("buffer_load_dword v%d, v%d, %s, 0 offen sc0 sc1" % (vFL, vZ, srd("dbg")), tag="NL")]

    def nonce_get(self, lab):
        a = [I("WAITVM NL"), I("s_mov_b32 s%d, %d" % (sSPIN, self.c["spin"])),
             I("L_ng0%s:" % lab),
             I("v_readfirstlane_b32 s%d, v%d" % (sNONCE, vFL)),
             I("s_cmp_lg_u32 s%d, 0" % sNONCE), I("s_cbranch_scc1 L_ng1%s" % lab)]
        for x in ["buffer_load_dword v%d, v%d, %s, 0 offen sc0 sc1" % (vFL, vZ, srd("dbg")), "s_waitcnt vmcnt(0)",
                  "s_sub_u32 s%d, s%d, 1" % (sSPIN, sSPIN), "s_cmp_lg_u32 s%d, 0" % sSPIN, "s_cbranch_scc1 L_ng0%s" % lab]:
            a.append(I(x, opt="ng"))
        a.append(I("L_ng1%s:" % lab))
        a += lines("s_lshl_b32 s%d, s%d, 2\ns_add_u32 s%d, s%d, s%d\ns_lshl_b32 s%d, s%d, 2\ns_add_u32 s%d, s%d, s%d\ns_lshl_b32 s%d, s%d, 7\ns_add_u32 s%d, s%d, %d" %
                   (sFLO, sXCD, sFLO, sFLO, sBQ, sFLO, sFLO, sFLO, sFLO, sW, sFLO, sFLO, sFLO, sFLO, WS_FLAG))
        return a

    def poll(self, P, lab, soff, voff, nreg, lanes_mask=None):
        P("s_mov_b32 s%d, %d" % (sSPIN, self.c["spin"]))
        P("L_%s0:" % lab)
        if nreg == 4:
            P("buffer_load_dwordx4 %s, v%d, %s, s%d offen sc0 sc1" % (vr(vFL), voff, srd("ws"), soff))
        else:
            P("buffer_load_dword v%d, v%d, %s, s%d offen sc0 sc1" % (vFL, voff, srd("ws"), soff))
        P("s_waitcnt vmcnt(0)")
        if nreg == 4:
            for i in range(4): P("v_xor_b32 v%d, s%d, v%d" % (vFL + i, sNONCE, vFL + i))
            P("v_or3_b32 v%d, v%d, v%d, v%d" % (vFL, vFL, vFL + 1, vFL + 2))
            P("v_or_b32 v%d, v%d, v%d" % (vFL, vFL, vFL + 3))
            P("v_cmp_ne_u32 vcc, 0, v%d" % vFL)
        else:
            P("v_cmp_ne_u32 vcc, s%d, v%d" % (sNONCE, vFL))
        P("s_nop 1\ns_cbranch_vccz L_%s1" % lab)
        P("s_sub_u32 s%d, s%d, 1\ns_cmp_lg_u32 s%d, 0\ns_cbranch_scc1 L_%s0" % (sSPIN, sSPIN, sSPIN, lab))
        P("L_%s1:" % lab)

    def flag_store(self, calc):
        return calc + [I("v_mov_b32 v%d, s%d" % (vFL, sNONCE)), I("s_mov_b64 exec, 1"),
                       I("buffer_store_dword v%d, v%d, %s, s%d offen sc1" % (vFL, vZ, srd("ws"), sT0), tag="FS"),
                       I("s_mov_b64 exec, -1")]

    def pflag_off(self):
        return lines("s_lshl_b32 s%d, s%d, 2\ns_add_u32 s%d, s%d, s%d" % (sT0, sQ, sT0, sT0, sFLO))

    def flag2_off(self):
        return lines(("s_and_b32 s%d, s%d, 15\ns_lshl_b32 s%d, s%d, 5\ns_lshl_b32 s%d, s%d, 2\ns_add_u32 s%d, s%d, s%d\ns_add_u32 s%d, s%d, s%d\n" %
                      (sT0, sI, sT0, sT0, sT1, sXCD, sT0, sT0, sT1, sT0, sT0, sW)) +
                     "s_lshl_b32 s%d, s%d, 2\ns_add_u32 s%d, s%d, %d" % (sT0, sT0, sT0, sT0, WS_FLAG2))

    def chk_addr(self):
        pass

    def flags_load(self, role, tag, opt=None):
        t = vT[2]
        a = lines("s_lshr_b32 s%d, s%d, 4\ns_lshl_b32 s%d, s%d, 1\ns_lshr_b32 s%d, s%d, 2\ns_add_u32 s%d, s%d, s%d" % (sT1, sI, sT1, sT1, sT0, sXCD, sT1, sT1, sT0))
        a += lines("s_and_b32 s%d, s%d, 15\ns_lshl_b32 s%d, s%d, 5\ns_add_u32 s%d, s%d, s%d\ns_lshl_b32 s%d, s%d, 2\ns_add_u32 s%d, s%d, %d" %
                   (sT0, sI, sT0, sT0, sT0, sT0, sT1, sT0, sT0, sT0, sT0, WS_FLAG2))
        a += lines("v_and_b32 v%d, 7, v%d\nv_lshlrev_b32 v%d, 4, v%d" % (t, vLANE, t, t))
        a.append(I("buffer_load_dword v%d, v%d, %s, s%d offen sc1" % (vFL, t, srd("ws"), sT0), tag=tag))
        if role == "B":
            a += lines("v_and_b32 v%d, 3, v%d\nv_lshlrev_b32 v%d, 2, v%d" % (t, vLANE, t, t))
            a.append(I("buffer_load_dword v%d, v%d, %s, s%d offen sc1" % (vFL + 1, t, srd("ws"), sFLO), tag=tag))
        for x in a: x.opt = opt
        return a

    def flags_check(self, role):
        lab = "fc" + role
        a = [I("WAITVM FLD"), I("s_mov_b32 s%d, %d" % (sSPIN, self.c["spin"])), I("L_%s0:" % lab),
             I("v_xor_b32 v%d, s%d, v%d" % (vFL, sNONCE, vFL))]
        if role == "B":
            a += [I("v_xor_b32 v%d, s%d, v%d" % (vFL + 1, sNONCE, vFL + 1)), I("v_or_b32 v%d, v%d, v%d" % (vFL, vFL, vFL + 1))]
        a += [I("v_cmp_ne_u32 vcc, 0, v%d" % vFL), I("s_nop 1"), I("s_cbranch_vccz L_%s1" % lab)]
        a += self.flags_load(role, None, opt=lab)
        for x in ["s_waitcnt vmcnt(0)", "s_sub_u32 s%d, s%d, 1" % (sSPIN, sSPIN), "s_cmp_lg_u32 s%d, 0" % sSPIN, "s_cbranch_scc1 L_%s0" % lab]:
            a.append(I(x, opt=lab))
        a.append(I("L_%s1:" % lab))
        return a

    def arrive(self):
        a = [I("s_cmp_lg_u32 s%d, 0" % sW), I("s_cbranch_scc1 L_arr")]
        for x in ["s_and_b32 s%d, s%d, 1" % (sT0, sXCD), "s_lshl_b32 s%d, s%d, 7" % (sT0, sT0), "s_mov_b32 s%d, 1" % sFLO,
                  "s_atomic_add s%d, s[%d:%d], s%d" % (sFLO, SRD["dbg"], SRD["dbg"] + 1, sT0)]:
            a.append(I(x, opt="arr"))
        a.append(I("L_arr:"))
        return a

    def cnt_load(self):
        d = SRD["dbg"]
        return [I("s_load_dword s%d, s[%d:%d], 0" % (sNONCE, d, d + 1)), I("s_load_dword s%d, s[%d:%d], 128" % (sJ, d, d + 1))]

    def cnt_check(self, role):
        lab = "cc" + role
        t = vT[2]
        a = [I("s_waitcnt lgkmcnt(0)"), I("s_add_u32 s%d, s%d, s%d" % (sNONCE, sNONCE, sJ)),
             I("s_cmp_eq_u32 s%d, 128" % sNONCE), I("s_cbranch_scc1 L_%s1" % lab)]
        b = ["s_mov_b32 s%d, %d" % (sSPIN, self.c["spin"]), "v_and_b32 v%d, 1, v%d" % (t, vLANE), "v_lshlrev_b32 v%d, 7, v%d" % (t, t), "L_%s0:" % lab,
             "buffer_load_dword v%d, v%d, %s, 0 offen sc1" % (vFL, t, srd("dbg")), "s_waitcnt vmcnt(0)",
             "v_cmp_ne_u32 vcc, 64, v%d" % vFL, "s_nop 1", "s_cbranch_vccz L_%s1" % lab,
             "s_sub_u32 s%d, s%d, 1" % (sSPIN, sSPIN), "s_cmp_lg_u32 s%d, 0" % sSPIN, "s_cbranch_scc1 L_%s0" % lab]
        a += [I(x, opt=lab) for x in b]
        a.append(I("L_%s1:" % lab))
        return a

    def p_off(self, role):
        a = lines("s_lshl_b32 s%d, s%d, 2\ns_add_u32 s%d, s%d, s%d\ns_lshl_b32 s%d, s%d, 5" % (sT0, sBQ, sT0, sT0, sW, sT0, sT0))
        a += lines("s_lshl_b32 s%d, s%d, 2\ns_add_u32 s%d, s%d, s%d" % (sT1, sXCD, sT0, sT0, sT1))
        if role == "A": a += lines("s_add_u32 s%d, s%d, s%d" % (sT0, sT0, sQ))
        a += lines("s_lshl_b32 s%d, s%d, 11" % (sT0, sT0))
        return a

    def roleA(self, P):
        c = self.c
        vQ, vS = 64, 32
        aW, aX, aK = 0, 64, 96
        P("s_lshl_b32 s%d, s%d, 2\ns_add_u32 s%d, s%d, s%d" % (sT0, sXCD, sT0, sT0, sQ))
        P("s_lshl_b32 s%d, s%d, 2\ns_add_u32 s%d, s%d, s%d" % (sT1, sBQ, sT1, sT1, sW))
        if c.get("same"): P("s_mov_b32 s%d, 0\ns_mov_b32 s%d, s%d" % (sT0, sT1, sW))
        P("s_mul_i32 s%d, s%d, 384\ns_mul_i32 s%d, s%d, %d\ns_add_u32 s%d, s%d, s%d" % (sWO_, sT0, sT2, sW, 16 * 12288, sWO_, sWO_, sT2))
        P("s_mul_i32 s%d, s%d, %d" % (sPO_, sT1, 32 * 1280))
        P("s_lshl_b32 s%d, s%d, 5\ns_add_u32 s%d, s%d, s%d\ns_mul_i32 s%d, s%d, 12288" % (sKO, sT1, sKO, sKO, sT0, sKO, sKO))
        P("s_mul_i32 s%d, s%d, 6144" % (sWM, sW))
        if c["rot"]:
            P("s_add_u32 s%d, s%d, s%d" % (sT0, sBQ, sQ))
            for k in range(6):
                P("s_add_u32 s%d, s%d, %d\ns_and_b32 s%d, s%d, %d" % (sT1, sT0, k, sT1, sT1, 3 if k < 4 else 1))
                P("s_mul_i32 s%d, s%d, %d\ns_add_u32 s%d, s%d, s%d" % (sRW[k], sT1, 64 * 12288, sRW[k], sRW[k], sWO_))
                P("s_lshl_b32 s%d, s%d, 7\ns_add_u32 s%d, s%d, s%d" % (sRP[k], sT1, sRP[k], sRP[k], sPO_))
        self.tabW(P, "A")
        self.tab128(P, [(vDP, 1280)])
        self.srds(P)
        tp = self.touch_plan("A")
        for g in tp.get(-1, []): P(self.touch(*g))
        sent = c["sent"] and c["mode"] == "h1"
        if not sent: self.nonce_store(P)
        def dma_stage(s):
            if c["rot"]:
                k = s % 4 if s < 8 else s - 4
                s0 = s - s % 4
                return self.dmaP("x", vDP, sRP[k], 128 * s0, s % 4, "S%d" % s) + self.dmaW("A", s, sRW[k], s0 * 64 * 12288)
            return self.dmaP("x", vDP, sPO_, 128 * s, s % 4, "S%d" % s) + self.dmaW("A", s, sWO_, s * 64 * 12288)
        for s in range(c["depth"]):
            for a in dma_stage(s): P(a)
        self.tabR(P, "A")
        self.tab128(P, [(vDK, 384)])
        def mfma(s, ks, t, w, p):
            cs = "0" if (s == 0 and ks == 0) else vr(vQ + 16 * t, 16)
            return I("%s %s, %s, %s, %s" % (MF, vr(vQ + 16 * t, 16), ar(w), ar(p), cs))
        kp = c["kpos"]
        def extra_fill(s):
            f = [self.touch(*g) for g in tp.get(s, [])]
            if not sent:
                if s == 2: f.append(self.nonce_load())
                if s == 4: f.append(self.nonce_get("A"))
            elif s == c["chkA"]: f.append(self.cnt_load())
            if c["depth"] >= 3:
                if s == 7: f += self.dmaP("k", vDK, sKO, 0, 2, "K0")
                if s == 8: f += self.dmaP("k", vDK, sKO, 128, 3, "K1")
            elif s == 8: f += self.dmaP("k", vDK, sKO, 0, 2, "K0") + self.dmaP("k", vDK, sKO, 128, 3, "K1")
            if s == 9: f += self.dmaP("k", vDK, sKO, 256, 0, "K2")
            return f
        self.stages(P, "A", 10, 6, dma_stage, mfma, aW, aX, extra_fill, lambda s, ks: [])
        self.stamp(P)
        if sent: P(self.cnt_check("A"))
        for a, sl in enumerate((2, 3, 0)):
            P("WAITVM K%d" % a)
            P(self.readP(aK + 16 * a, sl, "KF%d" % a))
            for t in (2 * a, 2 * a + 1):
                q = vQ + 16 * t
                for i in range(8):
                    P("v_cvt_pk_bf16_f32 v%d, v%d, v%d" % (q + i, q + 2 * i, q + 2 * i + 1))
            P("WAITLG KF%d" % a)
            for jj in range(4):
                j = 4 * a + jj
                cs = "0" if j == 0 else vr(vS, 16)
                P("%s %s, %s, %s, %s" % (MF, vr(vS, 16), ar(aK + 4 * j), vr(vQ + 16 * (j // 2) + 4 * (j % 2)), cs))
        self.stamp(P)
        self.softmax(P, vS)
        P(self.p_off("A"))
        if sent:
            for i in range(8): P("v_and_b32 v%d, 0x7fff7fff, v%d" % (56 + i, 56 + i))
        for m in range(2):
            P("buffer_store_dwordx4 %s, v%d, %s, s%d offen offset:%d %s" % (vr(56 + 4 * m), vL16, srd("ws"), sT0, WS_P + 1024 * m, c["stfl"]))
        self.stamp(P)
        if not sent:
            P("s_waitcnt vmcnt(0)")
            P(self.flag_store(self.pflag_off()))
        self.stamp(P)

    def softmax(self, P, R):
        m, m2, Q, PB = 48, 49, 50, 56
        P("v_max3_f32 v%d, v%d, v%d, v%d" % (m, R, R + 1, R + 2))
        P("v_max3_f32 v%d, v%d, v%d, v%d" % (m2, R + 3, R + 4, R + 5))
        for i in range(6, 14, 4):
            P("v_max3_f32 v%d, v%d, v%d, v%d" % (m, m, R + i, R + i + 1))
            P("v_max3_f32 v%d, v%d, v%d, v%d" % (m2, m2, R + i + 2, R + i + 3))
        P("v_max3_f32 v%d, v%d, v%d, v%d" % (m, m, R + 14, R + 15))
        P("v_max_f32 v%d, v%d, v%d" % (m, m, m2))
        P("v_mov_b32 v%d, v%d" % (m2, m))
        P("v_permlane32_swap_b32 v%d, v%d" % (m, m2))
        P("v_max_f32 v%d, v%d, v%d" % (m, m, m2))
        cval = struct.unpack("<I", struct.pack("<f", 192 ** -0.5 * math.log2(math.e)))[0]
        P("s_mov_b32 s%d, 0x%x" % (sT0, cval))
        P("v_mul_f32 v%d, s%d, v%d" % (m, sT0, m))
        for i in range(16):
            P("v_fma_f32 v%d, v%d, s%d, -v%d" % (R + i, R + i, sT0, m))
        for i in range(16):
            P("v_exp_f32 v%d, v%d" % (R + i, R + i))
        P("v_add_f32 v%d, v%d, v%d" % (Q, R, R + 1))
        P("v_add_f32 v%d, v%d, v%d" % (Q + 1, R + 2, R + 3))
        P("v_add_f32 v%d, v%d, v%d" % (Q + 2, R + 4, R + 5))
        P("v_add_f32 v%d, v%d, v%d" % (Q + 3, R + 6, R + 7))
        for i in range(8, 16):
            P("v_add_f32 v%d, v%d, v%d" % (Q + i % 4, Q + i % 4, R + i))
        P("v_add_f32 v%d, v%d, v%d" % (Q, Q, Q + 1))
        P("v_add_f32 v%d, v%d, v%d" % (Q + 2, Q + 2, Q + 3))
        P("v_add_f32 v%d, v%d, v%d" % (m, Q, Q + 2))
        P("v_mov_b32 v%d, v%d" % (m2, m))
        P("v_permlane32_swap_b32 v%d, v%d" % (m, m2))
        P("v_add_f32 v%d, v%d, v%d" % (m, m, m2))
        P("v_rcp_f32 v%d, v%d" % (m, m))
        for i in range(16):
            P("v_mul_f32 v%d, v%d, v%d" % (R + i, R + i, m))
        for i in range(8):
            P("v_cvt_pk_bf16_f32 v%d, v%d, v%d" % (PB + i, R + 2 * i, R + 2 * i + 1))

    def roleB(self, P):
        c = self.c
        vU = [64, 144]; vTMP = 32
        aW, aV, aU, aP = 0, 64, 96, 216
        P("s_lshl_b32 s%d, s%d, 2" % (sT0, sXCD))
        P("s_lshl_b32 s%d, s%d, 2\ns_add_u32 s%d, s%d, s%d" % (sT1, sBQ, sT1, sT1, sW))
        if c.get("same"): P("s_mov_b32 s%d, 0\ns_mov_b32 s%d, s%d" % (sT0, sT1, sW))
        P("s_mul_i32 s%d, s%d, 245760\ns_mul_i32 s%d, s%d, %d\ns_add_u32 s%d, s%d, s%d" % (sWO_, sT0, sT2, sW, 16 * 1280, sWO_, sWO_, sT2))
        P("s_mul_i32 s%d, s%d, 320\ns_add_u32 s%d, s%d, s%d" % (sT2, sQ, sWO_, sWO_, sT2))
        P("s_lshl_b32 s%d, s%d, 5\ns_add_u32 s%d, s%d, s%d\ns_mul_i32 s%d, s%d, 12288" % (sPO_, sT1, sPO_, sPO_, sT0, sPO_, sPO_))
        P("s_mul_i32 s%d, s%d, 5120" % (sWM, sW))
        if c["rot"]:
            P("s_add_u32 s%d, s%d, s%d" % (sT0, sBQ, sQ))
            for k in range(3):
                P("s_add_u32 s%d, s%d, %d\ns_mul_i32 s%d, s%d, 86\ns_lshr_b32 s%d, s%d, 8\ns_mul_i32 s%d, s%d, 3\ns_sub_u32 s%d, s%d, s%d" %
                  (sT1, sT0, k, sT2, sT1, sT2, sT2, sT2, sT2, sT1, sT1, sT2))
                P("s_mul_i32 s%d, s%d, %d\ns_add_u32 s%d, s%d, s%d" % (sRW[k], sT1, 64 * 1280, sRW[k], sRW[k], sWO_))
                P("s_lshl_b32 s%d, s%d, 7\ns_add_u32 s%d, s%d, s%d" % (sRP[k], sT1, sRP[k], sRP[k], sPO_))
        self.tabW(P, "B")
        self.tab128(P, [(vDP, 384)])
        self.srds(P)
        tp = self.touch_plan("B")
        if c["bdelay"]: P("s_sleep %d" % c["bdelay"])
        for g in tp.get(-1, []): P(self.touch(*g))
        def dma_stage(s):
            h, a = divmod(s, 3)
            if c["rot"]:
                return self.dmaP("v", vDP, sRP[a], h * 12288, s % 4, "S%d" % s) + self.dmaW("B", s, sRW[a], h * 192 * 1280)
            return self.dmaP("v", vDP, sPO_, h * 12288 + 128 * a, s % 4, "S%d" % s) + self.dmaW("B", s, sWO_, s * 64 * 1280)
        sent = c["sent"] and c["mode"] == "h1"
        def clears():
            P("s_and_b32 s%d, s%d, 15\ns_lshl_b32 s%d, s%d, 3\ns_add_u32 s%d, s%d, s%d" % (sPST, sI, sPST, sPST, sPST, sPST, sXCD))
            P("s_lshl_b32 s%d, s%d, 2\ns_add_u32 s%d, s%d, s%d\ns_mul_i32 s%d, s%d, 10240\ns_add_u32 s%d, s%d, %d" % (sPST, sPST, sPST, sPST, sW, sPST, sPST, sPST, sPST, WS_PART))
            if not sent: return
            for i in range(4): P("v_mov_b32 v%d, -1" % (224 + i))
            P(self.p_off("A"))
            for m in range(2):
                P(I("buffer_store_dwordx4 %s, v%d, %s, s%d offen offset:%d sc1" % (vr(224), vL16, srd("ws"), sT0, WS_P + 1024 * m), tag="CLR"))
            for k in range(10):
                if k % 4 == 0: P("s_add_u32 s%d, s%d, %d" % (sT0, sPST, 1024 * k))
                P(I("buffer_store_dwordx4 %s, v%d, %s, s%d offen offset:%d sc1" % (vr(224), vL16, srd("ws"), sT0, 1024 * (k % 4)), tag="CLR"))
        for s in range(c["depth"]):
            if s == c["clrpos"]: clears()
            for a in dma_stage(s): P(a)
        if c["clrpos"] >= c["depth"]: clears()
        self.tabR(P, "B")
        def mfma(s, ks, t, w, p):
            u = vU[(s // 3) % 2] + 16 * t
            cs = "0" if (s % 3 == 0 and ks == 0) else vr(u, 16)
            return I("%s %s, %s, %s, %s" % (MF, vr(u, 16), ar(p), ar(w), cs))
        def extra_fill(s):
            f = [self.touch(*g) for g in tp.get(s, [])]
            if not sent:
                if s == 2: f.append(self.nonce_load())
                if s == 4: f.append(self.nonce_get("B"))
            else:
                if s == c["clrpos"]: f.append(self.arrive())
                if s == c["chkB"]: f.append(self.cnt_load())
            return f
        def extra_comp(s, ks):
            h, a = divmod(s, 3)
            if h == 0: return []
            n = 4 * a + ks - 1
            if n < 0 or n >= 10: return []
            t, half = divmod(n, 2)
            u = vU[(h - 1) % 2] + 16 * t + 8 * half
            r = []
            for i in range(4):
                r.append([I("v_cvt_pk_bf16_f32 v%d, v%d, v%d" % (vTMP + (4 * n + i) % 8, u + 2 * i, u + 2 * i + 1)),
                          I("v_accvgpr_write_b32 a%d, v%d" % (aU + 40 * (h - 1) + 8 * t + 4 * half + i, vTMP + (4 * n + i) % 8))])
            return r
        self.stages(P, "B", 12, 5, dma_stage, mfma, aW, aV, extra_fill, extra_comp)
        self.stamp(P)
        if sent: P(self.cnt_check("B"))
        u3 = vU[1]
        for t in range(5):
            for i in range(8):
                P("v_cvt_pk_bf16_f32 v%d, v%d, v%d" % (u3 + 16 * t + i, u3 + 16 * t + 2 * i, u3 + 16 * t + 2 * i + 1))
        self.stamp(P)
        P(self.p_off("B"))
        P("s_add_u32 s%d, s%d, 4096" % (sT1, sT0))
        vP = 224
        if not sent:
            self.poll(P, "pp", sFLO, vZ, 4)
            self.stamp(P)
        else:
            P("s_mov_b32 s%d, %d" % (sSPIN, c["spin"]))
            P("L_pl0:")
        for h in range(4):
            for m in range(2):
                P(I("buffer_load_dwordx4 %s, v%d, %s, s%d offen offset:%d %s" % (vr(vP + 8 * h + 4 * m), vL16, srd("ws"), (sT0, sT1)[h // 2], WS_P + (h % 2) * 2048 + 1024 * m, c["pollfl"]), tag="PL%d" % h))
        if sent:
            t = vTMP
            for h in range(4):
                P("WAITVM PL%d" % h)
                p = vP + 8 * h
                if h == 0: P("v_or_b32 v%d, v%d, v%d" % (t, p, p + 1))
                else: P("v_or3_b32 v%d, v%d, v%d, v%d" % (t, t, p, p + 1))
                for i in range(2, 8, 2): P("v_or3_b32 v%d, v%d, v%d, v%d" % (t, t, p + i, p + i + 1))
            P("v_cmp_gt_i32 vcc, 0, v%d" % t)
            P("s_nop 1\ns_cbranch_vccz L_pl1")
            P("s_sub_u32 s%d, s%d, 1\ns_cmp_lg_u32 s%d, 0\ns_cbranch_scc1 L_pl0" % (sSPIN, sSPIN, sSPIN))
            P("L_pl1:")
        else:
            P("WAITVM PL3")
        self.stamp(P)
        vO = vU[0]
        fl = c["stfl"] if c["mode"] == "h1" else ""
        def pu(t):
            r = []
            for h in range(4):
                for m in range(2):
                    ua = ar(aU + 40 * h + 8 * t + 4 * m) if h < 3 else vr(u3 + 16 * t + 4 * m)
                    cs = "0" if (h == 0 and m == 0) else vr(vO + 16 * t, 16)
                    r.append([I("%s %s, %s, %s, %s" % (MF, vr(vO + 16 * t, 16), ua, vr(vP + 8 * h + 4 * m), cs))])
            return r
        def fin(t):
            o = vO + 16 * t
            r = [[I("v_cvt_pk_bf16_f32 v%d, v%d, v%d" % (o + i, o + 2 * i, o + 2 * i + 1))] for i in range(8)]
            if sent: r += [[I("v_min_u32 v%d, -2, v%d" % (o + i, o + i))] for i in range(8)]
            so = self.nsoff()
            r.append([I("s_add_u32 s%d, s%d, %d" % (so, sPST, 2048 * t)),
                      I("buffer_store_dwordx4 %s, v%d, %s, s%d offen %s" % (vr(o), vL16, srd("ws"), so, fl), tag="OST")])
            r.append([I("buffer_store_dwordx4 %s, v%d, %s, s%d offen offset:1024 %s" % (vr(o + 4), vL16, srd("ws"), so, fl), tag="OST")])
            return r
        for t in range(5):
            at = pu(t)
            if t: at = interleave(at, fin(t - 1), 3, 8)
            for a in at: P(a)
        for a in fin(4): P(a)
        self.stamp(P)
        if c["mode"] == "h1" and not sent:
            P("s_waitcnt vmcnt(0)")
            P(self.flag_store(self.flag2_off()))
            self.stamp(P)

    def reduce(self, P, fused):
        u, blk, ln, off, T, b = 2, 3, 4, 5, 6, 7
        P("s_lshr_b32 s%d, s%d, 4\ns_lshl_b32 s%d, s%d, 3\ns_add_u32 s%d, s%d, s%d" % (sT2, sI, sT2, sT2, sT2, sT2, sXCD))
        P("s_mul_i32 s%d, s%d, 160\ns_mul_i32 s%d, s%d, 40\ns_add_u32 s%d, s%d, s%d" % (sT0, sT2, sT1, sW, sT0, sT0, sT1))
        P("v_add_u32 v%d, s%d, v%d" % (u, sT0, vLANE))
        P("v_lshrrev_b32 v%d, 6, v%d" % (blk, u))
        P("v_and_b32 v%d, 63, v%d" % (ln, u))
        P("v_lshlrev_b32 v%d, 4, v%d" % (off, u))
        P("v_and_b32 v%d, 0x13, v%d" % (T, ln))
        P("v_and_b32 v%d, 4, v%d" % (b, ln))
        P("v_lshl_or_b32 v%d, v%d, 1, v%d" % (T, b, T))
        P("v_and_b32 v%d, 8, v%d" % (b, ln))
        P("v_lshrrev_b32 v%d, 1, v%d" % (b, b))
        P("v_or_b32 v%d, v%d, v%d" % (T, T, b))
        P("v_mul_u32_u24 v%d, 1280, v%d" % (T, T))
        P("v_lshl_add_u32 v%d, v%d, 5, v%d" % (T, blk, T))
        P("v_lshrrev_b32 v%d, 5, v%d" % (b, ln))
        P("v_lshl_add_u32 v%d, v%d, 4, v%d" % (b, b, T))
        so = sSOFF[0]
        P("s_lshr_b32 s%d, s%d, 2" % (sT2, sT2))
        P("s_mul_i32 s%d, s%d, %d" % (so, sT2, 32 * 1280 - 320))
        P("s_mul_i32 s%d, s%d, %d\ns_add_u32 s%d, s%d, s%d" % (sT1, sBQ, 128 * 1280, so, so, sT1))
        P("s_mul_i32 s%d, s%d, 320\ns_add_u32 s%d, s%d, s%d" % (sT1, sQ, so, so, sT1))
        ld = ""
        sent = fused and self.c["sent"]
        if sent: ld = self.c["pollfl"]
        if fused and not sent:
            P("s_and_b32 s%d, s%d, 15\ns_lshl_b32 s%d, s%d, 5\ns_add_u32 s%d, s%d, s%d\ns_lshl_b32 s%d, s%d, 2\ns_add_u32 s%d, s%d, %d" %
              (sT0, sI, sT0, sT0, sT0, sT0, sT2, sT0, sT0, sT0, sT0, WS_FLAG2))
            P("v_and_b32 v8, 7, v%d\nv_lshlrev_b32 v8, 4, v8" % vLANE)
            self.poll(P, "rp", sT0, 8, 1)
            self.stamp(P)
            ld = "sc1"
        P("s_and_b32 s%d, s%d, 15\ns_mul_i32 s%d, s%d, %d\ns_add_u32 s%d, s%d, %d" % (sT0, sI, sT0, sT0, 8 * 40960, sT0, sT0, WS_PART))
        P("s_mov_b32 exec_hi, 0xff")
        D = 32
        if sent:
            if self.c["apoll"]:
                P("s_cmp_ge_u32 s%d, 16\ns_cbranch_scc1 L_ap1" % sI)
                P("s_mov_b32 s%d, %d" % (sSPIN, self.c["spin"]), opt="ap")
                P("s_mul_i32 s%d, s%d, 40960\ns_add_u32 s%d, s%d, s%d" % (sT1, sXCD, sT1, sT1, sT0), opt="ap")
                P("L_ap0:")
                P("buffer_load_dword v8, v%d, %s, s%d offen %s\ns_waitcnt vmcnt(0)" % (off, srd("ws"), sT1, ld), opt="ap")
                P("v_cmp_eq_u32 vcc, -1, v8\ns_nop 1\ns_cbranch_vccz L_ap1", opt="ap")
                if self.c["asleep"]: P("s_sleep %d" % self.c["asleep"], opt="ap")
                P("s_sub_u32 s%d, s%d, 1\ns_cmp_lg_u32 s%d, 0\ns_cbranch_scc1 L_ap0" % (sSPIN, sSPIN, sSPIN), opt="ap")
                P("L_ap1:")
            P("s_mov_b32 s%d, %d" % (sSPIN, self.c["spin"]))
            P("L_rl0:")
        P("s_mov_b32 s%d, s%d" % (sT1, sT0))
        for x in range(8):
            P(I("buffer_load_dwordx4 %s, v%d, %s, s%d offen %s" % (vr(D + 8 * x), off, srd("ws"), sT1, ld), tag="R%d" % x))
            if x < 7: P("s_add_u32 s%d, s%d, 40960" % (sT1, sT1))
        if sent:
            for x in range(8):
                P("WAITVM R%d" % x)
                d = D + 8 * x
                if x == 0: P("v_max_u32 v8, v%d, v%d" % (d, d + 1))
                else: P("v_max3_u32 v8, v8, v%d, v%d" % (d, d + 1))
                P("v_max3_u32 v8, v8, v%d, v%d" % (d + 2, d + 3))
            P("v_cmp_eq_u32 vcc, -1, v8")
            P("s_nop 1\ns_cbranch_vccz L_rl1")
            P("s_sub_u32 s%d, s%d, 1\ns_cmp_lg_u32 s%d, 0\ns_cbranch_scc1 L_rl0" % (sSPIN, sSPIN, sSPIN))
            P("L_rl1:")
            self.stamp(P)
        A = 100
        for x in range(8):
            P("WAITVM R%d" % x)
            d = D + 8 * x
            for i in (3, 2, 1, 0):
                P("v_and_b32 v%d, 0xffff0000, v%d" % (d + 2 * i + 1, d + i))
                P("v_lshlrev_b32 v%d, 16, v%d" % (d + 2 * i, d + i))
            if x > 0:
                for i in range(0, 8, 2):
                    P("v_pk_add_f32 v[%d:%d], v[%d:%d], v[%d:%d]" % (D + i, D + i + 1, D + i, D + i + 1, d + i, d + i + 1))
        for i in range(4):
            P("v_cvt_pk_bf16_f32 v%d, v%d, v%d" % (A + i, D + 2 * i, D + 2 * i + 1))
        P("buffer_store_dwordx4 %s, v%d, %s, s%d offen" % (vr(A), b, srd("out"), so))

    def fin(self, P):
        if self.c.get("nomfma"):
            P.ins = [x for x in P.ins if not x.txt.startswith("v_mfma")]
        return P.finalize()

    def main_kernel(self):
        fused = self.c["mode"] == "h1"
        P0 = Prog(); self.prologue(P0, "L_end")
        P0("s_cmp_ge_u32 s%d, 16\ns_cbranch_scc1 L_roleB" % sI)
        n0 = self.nst
        txt = self.fin(P0)
        for role in "AB":
            P = Prog(); self.nst = n0
            if role == "B": P("L_roleB:")
            P("s_nop 4")
            (self.roleA if role == "A" else self.roleB)(P)
            if fused:
                P("s_branch L_red" if role == "A" else "s_nop 0")
            else:
                self.dump_stamps(P, 0)
                P("s_endpgm")
            txt += self.fin(P)
        if fused:
            P = Prog(); P("L_red:"); P("s_nop 4")
            self.nst = 12
            self.reduce(P, True)
            self.stamp(P)
            self.dump_stamps(P, 0)
            txt += self.fin(P)
        txt += "L_end:\n    s_endpgm\n"
        return txt

    def red_kernel(self):
        P = Prog(); self.prologue(P, "L_end3"); self.srds(P)
        self.reduce(P, False); self.stamp(P); self.dump_stamps(P, 1)
        P("L_end3:\ns_endpgm")
        return self.fin(P)

    def build(self):
        c = self.c
        if c["mode"] == "h2":
            ks = [("gqa1_kernel", self.main_kernel, 512, 163840), ("gqa3_kernel", self.red_kernel, 128, 0)]
        else:
            ks = [(NAME + "_kernel", self.main_kernel, 512, 163840)]
        txt = HDR
        if len(ks) == 1:
            txt += "; @launch grid=(256,1,1) block=(256,1,1) lds=163840\n"
        else:
            for (lab, _, _, lds) in ks:
                txt += "; @launch kernel=%s grid=(256,1,1) block=(256,1,1) lds=%d\n" % (lab, lds)
        txt += '.amdgcn_target "amdgcn-amd-amdhsa--gfx950"\n.text\n'
        kds = ""
        for (lab, body, vg, _) in ks:
            txt += ".globl %s\n.p2align 8\n.type %s,@function\n%s:\n" % (lab, lab, lab) + body()
            acc = 256 if vg > 256 else vg
            kds += (".p2align 6\n.amdhsa_kernel %s\n  .amdhsa_next_free_vgpr %d\n  .amdhsa_next_free_sgpr 102\n  .amdhsa_accum_offset %d\n"
                    "  .amdhsa_group_segment_fixed_size 0\n  .amdhsa_kernarg_size 64\n  .amdhsa_user_sgpr_count 2\n"
                    "  .amdhsa_user_sgpr_kernarg_segment_ptr 1\n  .amdhsa_system_sgpr_workgroup_id_x 1\n.end_amdhsa_kernel\n") % (lab, vg, acc)
        txt += '.section .rodata,"a"\n' + kds
        return txt

if __name__ == "__main__":
    out = sys.argv[1]
    kw = {}
    for a in sys.argv[2:]:
        k, v = a.split("=", 1)
        kw[k] = int(v) if v.lstrip("-").isdigit() else v
    open(out, "w").write(Gen(**kw).build())
```

```python
import sys, math, struct
from asmlib import *

NAME = "standalone__gqa_block_cached__near_ridge"
HDR = open("cdna_kernels/%s.s.ref" % NAME).read().split("; Override launch")[0]

DEF = dict(stamps=0, spin=20000, depth=2,
           tA="", tB="", ststage=0, rot=1, rpg=2, wgrp=1, sent=1, pollfl="sc1", stfl="sc1", apoll=1, asleep=0, clrpos=1, chkA=7, chkB=9, tlb=1, ne=8, leadE=0, leadL=0, outfl='', outwait=0, outlds=1, pdelay=0, rdelay=0, preP=7, preS=-1, kpos=8, bdelay=0, fillfrac=100)

sW, sXCD, sI, sQ, sBQ = 3, 4, 5, 6, 7
sPB = 8
sWO_, sPO_, sKO = 9, 10, 11
sWM = 12
sT0, sT1, sT2 = 13, 14, 15
sNONCE, sSPIN, sFLO, sJ = 16, 17, 18, 19
sDUM = 2
sPST = sKO
SRD = dict(x=32, k=36, v=40, wq=44, wo=48, out=52, ws=56, dbg=60)
KOFF = dict(x=0, k=8, v=16, wq=24, wo=32, out=40, dbg=48, ws=56)
PTR = dict(x=16, k=18, v=20, wq=22, wo=24, out=26, dbg=28, ws=30)
SIZE = dict(x=655360, k=6291456, v=6291456, wq=7864320, wo=7864320, out=655360, dbg=256, ws=268435456)
sRW = [20, 21, 22, 23, 24, 25]
sRP = [26, 27, 28, 29, 30, 31]
sSOFF = [64, 65, 66, 67]
sSTAMP = 70
vZ = 0
vLANE = 1
vDW = [2, 3, 4, 5, 6, 7]
vDP = [8, 9, 10, 11]
vDK = [12, 13, 14, 15]
vRP = [16, 17, 18, 19]
vRT = [20, 21, 22, 23]
vL16 = 24
vT = [25, 26, 27]
vFL = 28
WS_P = 0
WS_PART = 2 << 20
SLAB = 14336
WS_FLAG = 16 << 20
WS_FLAG2 = WS_FLAG + (1 << 16)
WS_STAMP = 32 << 20
NSLOT = 4
SLOT = 24576
PRIV0 = NSLOT * SLOT
MF = "v_mfma_f32_32x32x16_bf16"

def srd(n): return "s[%d:%d]" % (SRD[n], SRD[n] + 3)
def vr(b, n=4): return "v[%d:%d]" % (b, b + n - 1)
def ar(b, n=4): return "a[%d:%d]" % (b, b + n - 1)
def lines(x): return [I(l) for l in x.split("\n") if l.strip()]

class Gen:
    def __init__(self, **kw):
        self.c = dict(DEF); self.c.update(kw)
        self.nst = 0; self.soffi = 0

    def nsoff(self):
        s = sSOFF[self.soffi % len(sSOFF)]; self.soffi += 1
        return s

    def stamp_i(self):
        if not self.c["stamps"]: return []
        r = sSTAMP + 2 * self.nst; self.nst += 1
        if r + 1 > 101: return []
        return [I("%s s[%d:%d]" % ("s_memrealtime" if self.c["stamps"] == 2 else "s_memtime", r, r + 1))]
    def stamp(self, P): P(self.stamp_i())

    def dump_stamps(self, P, kidx):
        if not self.c["stamps"]: return
        P("s_waitcnt lgkmcnt(0)")
        P("s_lshl_b32 s%d, s%d, 3\ns_add_u32 s%d, s%d, s%d" % (sT0, sI, sT0, sT0, sXCD))
        P("s_lshl_b32 s%d, s%d, 2" % (sT0, sT0))
        P("s_add_u32 s%d, s%d, s%d" % (sT0, sT0, sW))
        P("s_lshl_b32 s%d, s%d, 8" % (sT0, sT0))
        P("s_add_u32 s%d, s%d, %d" % (sT0, sT0, WS_STAMP + (kidx << 20)))
        P("s_mov_b64 exec, 1")
        P("v_mov_b32 v2, 0")
        for i in range(16):
            P("v_mov_b32 v4, s%d\nv_mov_b32 v5, s%d" % (sSTAMP + 2 * i, sSTAMP + 2 * i + 1))
            P("buffer_store_dwordx2 v[4:5], v2, %s, s%d offen offset:%d" % (srd("ws"), sT0, 8 * i))
            P("s_nop 1")
        P("s_memrealtime s[%d:%d]\ns_waitcnt lgkmcnt(0)" % (sSTAMP, sSTAMP + 1))
        P("v_mov_b32 v4, s%d\nv_mov_b32 v5, s%d" % (sSTAMP, sSTAMP + 1))
        P("buffer_store_dwordx2 v[4:5], v2, %s, s%d offen offset:248" % (srd("ws"), sT0))
        P("s_nop 1")
        P("v_mov_b32 v4, s68\nv_mov_b32 v5, s69")
        P("buffer_store_dwordx2 v[4:5], v2, %s, s%d offen offset:240" % (srd("ws"), sT0))

    def prologue(self, P, lend):
        self.nst = 0
        if self.c["stamps"]:
            for r in range(sSTAMP, 102, 2): P("s_mov_b64 s[%d:%d], 0" % (r, r + 1))
            P("s_memrealtime s[68:69]")
        self.stamp(P)
        P("s_cmp_ge_u32 s2, 256\ns_cbranch_scc1 %s" % lend)
        for n in ("wq", "x", "wo", "v", "ws", "k", "dbg", "out"):
            P("s_load_dwordx2 s[%d:%d], s[0:1], %d" % (SRD[n], SRD[n] + 1, KOFF[n]))
        P("v_lshrrev_b32 v2, 6, v0")
        P("v_and_b32 v%d, 63, v0" % vLANE)
        P("v_readfirstlane_b32 s%d, v2" % sW)
        P("s_and_b32 s%d, s2, 7" % sXCD)
        P("s_lshr_b32 s%d, s2, 3" % sI)
        P("s_and_b32 s%d, s%d, 3" % (sQ, sI))
        P("s_bfe_u32 s%d, s%d, 0x20002" % (sBQ, sI))
        P("s_lshl_b32 s%d, s%d, 14\ns_add_u32 s%d, s%d, %d" % (sPB, sW, sPB, sPB, PRIV0))
        P("v_mov_b32 v%d, 0" % vZ)
        P("v_lshlrev_b32 v%d, 4, v%d" % (vL16, vLANE))

    def srds(self, P):
        for n in SRD:
            b = SRD[n]
            P("s_mov_b32 s%d, %d\ns_mov_b32 s%d, 0x20000" % (b + 2, SIZE[n], b + 3))
        P("s_and_b32 s%d, s%d, 15\ns_lshl_b32 s%d, s%d, 2\ns_add_u32 s%d, s%d, s%d" % (sJ, sI, sJ, sJ, sJ, sJ, sW))
        P("s_waitcnt lgkmcnt(0)")
        self.stamp(P)

    def tab128(self, P, tabs):
        t0, t1, t2 = vT; L = vLANE
        P("v_lshrrev_b32 v%d, 3, v%d" % (t0, L))
        P("v_lshrrev_b32 v%d, 4, v%d" % (t1, L))
        P("v_xor_b32 v%d, v%d, v%d" % (t1, t1, L))
        P("v_and_b32 v%d, 7, v%d" % (t1, t1))
        P("v_lshlrev_b32 v%d, 4, v%d" % (t1, t1))
        P("v_xor_b32 v%d, 64, v%d" % (t2, t1))
        for regs, pitch in tabs:
            P("v_mul_u32_u24 v%d, %d, v%d" % (regs[3], pitch, t0))
            P("v_add_u32 v%d, v%d, v%d" % (regs[0], regs[3], t1))
            P("v_add_u32 v%d, v%d, v%d" % (regs[1], regs[3], t2))
            P("v_add_u32 v%d, %d, v%d" % (regs[2], 2 * (8 * pitch - 1024), regs[0]))
            P("v_add_u32 v%d, %d, v%d" % (regs[3], 3 * (8 * pitch - 1024), regs[1]))
            P("v_add_u32 v%d, %d, v%d" % (regs[1], 8 * pitch - 1024, regs[1]))

    def tabW(self, P, role):
        t0, t1, t2 = vT; L = vLANE
        if role == "A":
            for j in range(3):
                P("v_add_u32 v%d, %d, v%d" % (t0, 64 * j, L))
                P("v_mul_u32_u24 v%d, 2731, v%d" % (t1, t0))
                P("v_lshrrev_b32 v%d, 16, v%d" % (t1, t1))
                P("v_mul_u32_u24 v%d, 24, v%d" % (t2, t1))
                P("v_sub_u32 v%d, v%d, v%d" % (t0, t0, t2))
                P("v_and_b32 v%d, 2, v%d" % (t2, t1))
                P("v_lshlrev_b32 v%d, 1, v%d" % (t2, t2))
                P("v_xor_b32 v%d, v%d, v%d" % (t0, t0, t2))
                P("v_mul_u32_u24 v%d, 12288, v%d" % (t2, t1))
                P("v_lshl_add_u32 v%d, v%d, 4, v%d" % (t0, t0, t2))
                if j: P("v_subrev_u32 v%d, %d, v%d" % (t0, 1024 * j, t0))
                P("v_mov_b32 v%d, v%d" % (vDW[j], t0))
                P("v_add_u32 v%d, %d, v%d" % (vDW[j + 3], 8 * 12288, t0))
        else:
            for j in range(5):
                P("v_add_u32 v%d, %d, v%d" % (t0, 64 * j, L))
                P("v_mul_u32_u24 v%d, 3277, v%d" % (t1, t0))
                P("v_lshrrev_b32 v%d, 16, v%d" % (t1, t1))
                P("v_mul_u32_u24 v%d, 20, v%d" % (t2, t1))
                P("v_sub_u32 v%d, v%d, v%d" % (t0, t0, t2))
                P("v_mul_u32_u24 v%d, 1280, v%d" % (t2, t1))
                imm = 1024 * (j % 3)
                if imm: P("v_subrev_u32 v%d, %d, v%d" % (t2, imm, t2))
                P("v_lshl_add_u32 v%d, v%d, 4, v%d" % (vDW[j], t0, t2))

    def tabR(self, P, role):
        t0, t1, t2 = vT; L = vLANE
        P("v_and_b32 v%d, 0x13, v%d" % (t0, L))
        P("v_and_b32 v%d, 4, v%d" % (t1, L))
        P("v_lshl_or_b32 v%d, v%d, 1, v%d" % (t0, t1, t0))
        P("v_and_b32 v%d, 8, v%d" % (t1, L))
        P("v_lshrrev_b32 v%d, 1, v%d" % (t1, t1))
        P("v_or_b32 v%d, v%d, v%d" % (t0, t0, t1))
        P("v_lshrrev_b32 v%d, 1, v%d" % (t1, t0))
        P("v_and_b32 v%d, 7, v%d" % (t1, t1))
        P("v_lshrrev_b32 v%d, 5, v%d" % (t2, L))
        P("v_xor_b32 v%d, v%d, v%d" % (t1, t1, t2))
        P("v_lshlrev_b32 v%d, 4, v%d" % (t1, t1))
        P("v_lshl_add_u32 v%d, v%d, 7, v%d" % (t0, t0, t1))
        P("v_add_u32 v%d, s%d, v%d" % (vRP[0], sPB, t0))
        for jj in range(1, 4):
            P("v_xor_b32 v%d, %d, v%d" % (vRP[jj], 32 * jj, vRP[0]))
        pitch = 384 if role == "A" else 320
        P("v_lshrrev_b32 v%d, 2, v%d" % (t0, L))
        P("v_and_b32 v%d, 3, v%d" % (t0, t0))
        P("v_lshl_add_u32 v%d, v%d, 3, v%d" % (t0, t2, t0))
        P("v_mul_u32_u24 v%d, %d, v%d" % (t0, pitch, t0))
        P("v_and_b32 v%d, 1, v%d" % (t1, L))
        if role == "A": P("v_lshlrev_b32 v%d, 4, v%d" % (t1, t1))
        else: P("v_mul_u32_u24 v%d, 160, v%d" % (t1, t1))
        P("v_and_b32 v%d, 2, v%d" % (t2, L))
        P("v_lshl_or_b32 v%d, v%d, 2, v%d" % (t1, t2, t1))
        P("v_and_b32 v%d, 16, v%d" % (t2, L))
        if role == "A": P("v_lshl_or_b32 v%d, v%d, 1, v%d" % (t1, t2, t1))
        else: P("v_or_b32 v%d, v%d, v%d" % (t1, t2, t1))
        P("v_add_u32 v%d, v%d, v%d" % (t0, t0, t1))
        if role == "A":
            P("v_and_b32 v%d, 8, v%d" % (t1, L))
            P("v_lshl_add_u32 v%d, v%d, 3, v%d" % (vRT[0], t1, t0))
            P("v_xor_b32 v%d, 64, v%d" % (vRT[1], vRT[0]))
            P("v_add_u32 v%d, %d, v%d" % (vRT[2], 2 * SLOT, vRT[0]))
            P("v_add_u32 v%d, %d, v%d" % (vRT[3], 2 * SLOT, vRT[1]))
        else:
            P("v_mov_b32 v%d, v%d" % (vRT[0], t0))
            P("v_add_u32 v%d, %d, v%d" % (vRT[1], 2 * SLOT, t0))

    def dmaW(self, role, s, sbase, goff):
        so = self.nsoff()
        n = 6 if role == "A" else 5
        base = (s % NSLOT) * SLOT
        atoms = []
        for j in range(n):
            a = []
            if j == 0:
                a += [I("s_add_u32 m0, s%d, %d" % (sWM, base)), I("s_add_u32 s%d, s%d, %d" % (so, sbase, goff))]
            if j == 3:
                a += [I("s_add_u32 m0, s%d, %d" % (sWM, base + 3072))]
            a.append(I("buffer_load_dwordx4 v%d, %s, s%d offen offset:%d lds" % (vDW[j], srd("wq" if role == "A" else "wo"), so, 1024 * (j % 3)), tag="S%d" % s))
            atoms.append(a)
        return atoms

    def dmaP(self, tensor, regs, sbase, goff, pslot, tag):
        so = self.nsoff()
        atoms = []
        for j in range(4):
            a = []
            if j == 0:
                a += [I("s_add_u32 m0, s%d, %d" % (sPB, pslot * 4096)), I("s_add_u32 s%d, s%d, %d" % (so, sbase, goff))]
            a.append(I("buffer_load_dwordx4 v%d, %s, s%d offen offset:%d lds" % (regs[j], srd(tensor), so, 1024 * j), tag=tag))
            atoms.append(a)
        return atoms

    def readP(self, dst, pslot, tag):
        return [I("ds_read_b128 %s, v%d offset:%d" % (ar(dst + 4 * jj), vRP[jj], pslot * 4096), tag=tag) for jj in range(4)]

    def readW(self, role, s, ks, t, dst):
        slot = s % NSLOT
        hi, lo = slot // 2, slot % 2
        r = []
        for u in range(2):
            if role == "A":
                reg = vRT[2 * hi + (t & 1)]
                off = lo * SLOT + ks * 6144 + 4 * u * 384 + 64 * (t & ~1)
            else:
                reg = vRT[hi]
                off = lo * SLOT + ks * 5120 + 4 * u * 320 + 32 * t
            r.append(I("ds_read_b64_tr_b16 %s, v%d offset:%d" % (ar(dst + 2 * u, 2), reg, off), tag="F%d_%d_%d" % (s, ks, t)))
        return r

    def touch(self, role, g):
        t0, t1, t2 = vT
        a = []
        A = lambda x: a.extend(lines(x))
        def ld(tensor, n, so):
            if n > 32: A("s_mov_b32 exec_hi, 0x%x" % ((1 << (n - 32)) - 1))
            else: A("s_mov_b64 exec, 0x%x" % ((1 << n) - 1) if n < 32 else "s_mov_b32 exec_hi, 0")
            a.append(I("buffer_load_dword a255, v%d, %s, s%d offen" % (t0, srd(tensor), so), tag="TCH"))
            A("s_mov_b64 exec, -1")
        if role == "A":
            ns = 4 if g == 2 else 3
            s0 = 3 * g
            so = self.nsoff()
            A("v_mul_u32_u24 v%d, 5462, v%d\nv_lshrrev_b32 v%d, 16, v%d" % (t0, vLANE, t0, t0))
            A("v_mul_u32_u24 v%d, %d, v%d" % (t0, 12288 - 1536, t0))
            A("v_lshl_add_u32 v%d, v%d, 7, v%d" % (t0, vLANE, t0))
            A("s_mul_i32 s%d, s%d, %d\ns_mul_i32 s%d, s%d, 1536\ns_add_u32 s%d, s%d, s%d\ns_add_u32 s%d, s%d, %d" %
              (so, sJ, ns * 12288, sT0, sXCD, so, so, sT0, so, so, 64 * s0 * 12288))
            ld("wq", 12 * ns, so)
            so = self.nsoff()
            if ns == 3: A("v_mul_u32_u24 v%d, 21846, v%d\nv_lshrrev_b32 v%d, 16, v%d" % (t0, vLANE, t0, t0))
            else: A("v_lshrrev_b32 v%d, 2, v%d" % (t0, vLANE))
            A("v_mul_u32_u24 v%d, %d, v%d" % (t0, 1280 - 128 * ns, t0))
            A("v_lshl_add_u32 v%d, v%d, 7, v%d" % (t0, vLANE, t0))
            A("s_mul_i32 s%d, s%d, %d\ns_add_u32 s%d, s%d, %d" % (so, sJ, 8 * 1280, so, so, 128 * s0))
            ld("x", 8 * ns, so)
        elif role == "K":
            A("v_lshlrev_b32 v%d, 7, v%d" % (t0, vLANE))
            so = self.nsoff()
            A("s_lshr_b32 s%d, s%d, 2\ns_lshl_b32 s%d, s%d, 5\ns_and_b32 s%d, s%d, 3\ns_add_u32 s%d, s%d, s%d" % (so, sJ, so, so, sT0, sJ, so, so, sT0))
            A("s_lshl_b32 s%d, s%d, 2\ns_add_u32 s%d, s%d, s%d\ns_mul_i32 s%d, s%d, 12288\ns_add_u32 s%d, s%d, %d" % (sT0, sXCD, so, so, sT0, so, so, so, so, g * 6144))
            ld("k", 48, so)
        else:
            A("v_lshlrev_b32 v%d, 7, v%d" % (t0, vLANE))
            so = self.nsoff()
            A("s_mul_i32 s%d, s%d, 3840\ns_mul_i32 s%d, s%d, %d\ns_add_u32 s%d, s%d, s%d\ns_add_u32 s%d, s%d, %d" %
              (so, sJ, sT0, sXCD, 4 * 245760, so, so, sT0, so, so, g * 245760))
            ld("wo", 30, so)
            so = self.nsoff()
            A("s_lshr_b32 s%d, s%d, 2\ns_mul_i32 s%d, s%d, 393216\ns_and_b32 s%d, s%d, 3\ns_mul_i32 s%d, s%d, 3072\ns_add_u32 s%d, s%d, s%d" %
              (so, sJ, so, so, sT0, sJ, sT0, sT0, so, so, sT0))
            A("s_mul_i32 s%d, s%d, %d\ns_add_u32 s%d, s%d, s%d\ns_add_u32 s%d, s%d, %d" % (sT0, sXCD, 4 * 12288, so, so, sT0, so, so, g * 12288))
            ld("v", 24, so)
        return a

    def touch_plan(self, role):
        d = {}
        for e in self.c["t" + role].split(","):
            if e:
                g, s = e.split(":"); d.setdefault(int(s), []).append((g[0], int(g[1:])))
        return d

    def stages(self, P, role, nst, NT, dma_stage, mfma, aW, aP, extra_fill, extra_comp):
        D = self.c["depth"]
        wbuf = lambda s, ks: aW + 4 * NT * ((4 * s + ks) % 2)
        pbuf = lambda s: aP + 16 * (s % 2)
        P("WAITVM S0")
        P("s_barrier")
        self.stamp(P)
        P(self.readP(pbuf(0), 0, "PF0"))
        for t in range(NT): P(self.readW(role, 0, 0, t, wbuf(0, 0) + 4 * t))
        carry = []
        for s in range(nst):
            if s == 0:
                carry = extra_fill(0) + (dma_stage(D) if D < nst else [])
                span = 3
            for ks in range(4):
                if ks == 3:
                    for a in carry: P(a)
                    carry = []
                    if D >= 3: P("WAITLG F%d_3_%d" % (s, NT - 1))
                    if s + 1 < nst:
                        P("WAITVM S%d" % (s + 1))
                        P("s_barrier")
                        if self.c["ststage"]: self.stamp(P)
                        carry = extra_fill(s + 1) + (dma_stage(s + 1 + D) if s + 1 + D < nst else [])
                    else:
                        carry = extra_fill(s + 1)
                    span = 4
                ns, nks = (s, ks + 1) if ks < 3 else (s + 1, 0)
                rds = []
                if ns < nst:
                    if nks == 0: rds += self.readP(pbuf(ns), ns % 4, "PF%d" % ns)
                    for t in range(NT): rds += self.readW(role, ns, nks, t, wbuf(ns, nks) + 4 * t)
                rpg = self.c["rpg"]
                if nks == 0 and rpg < 3: rpg = 3
                if D >= 3 and ks == 2 and rpg < 4: rpg = 4
                G = self.c["wgrp"]
                atoms = []
                for t in range(NT):
                    a = []
                    if t % G == 0:
                        w = ["F%d_%d_%d" % (s, ks, min(t + G - 1, NT - 1))]
                        if not (D >= 3 and ks == 3): a.append(I("WAITLG " + " ".join(w)))
                    a.append(mfma(s, ks, t, wbuf(s, ks) + 4 * t, pbuf(s) + 4 * ks))
                    k = rpg if t < NT - 1 else len(rds)
                    a += rds[:k]; rds = rds[k:]
                    atoms.append(a)
                left = {3: 4, 0: 3, 1: 2, 2: 1}[ks]
                if self.c["fillfrac"] < 100: left = max(1, left - 1)
                k = -(-len(carry) // left)
                mine, carry = carry[:k], carry[k:]
                atoms = interleave(atoms, mine)
                ex = extra_comp(s, ks)
                if ex: atoms = interleave(atoms, ex, 1 if len(atoms) > 1 else 0)
                for a in atoms: P(a)
        for a in carry: P(a)

    def nonce_store(self, P):
        P("s_or_b32 s%d, s2, s%d\ns_cmp_lg_u32 s%d, 0\ns_cbranch_scc1 L_nonce" % (sT0, sW, sT0))
        o = "nonce"
        d = SRD["dbg"]
        P("s_memrealtime s[%d:%d]\ns_waitcnt lgkmcnt(0)" % (sNONCE, sNONCE + 1), opt=o)
        P("s_or_b32 s%d, s%d, 1" % (sFLO, sNONCE), opt=o)
        P("s_atomic_add s%d, s[%d:%d], 0" % (sFLO, d, d + 1), opt=o)
        P("L_nonce:")

    def nonce_load(self):
        d = SRD["dbg"]
        return [I("s_load_dword s%d, s[%d:%d], 0" % (sNONCE, d, d + 1))]

    def nonce_get(self, role):
        lab = "ng" + role
        a = [I("s_waitcnt lgkmcnt(0)"), I("s_cmp_lg_u32 s%d, 0" % sNONCE), I("s_cbranch_scc1 L_%s1" % lab)]
        b = ["s_mov_b32 s%d, %d" % (sSPIN, self.c["spin"]), "L_%s0:" % lab,
             "buffer_load_dword v%d, v%d, %s, 0 offen sc1" % (vFL, vZ, srd("dbg")), "s_waitcnt vmcnt(0)",
             "v_readfirstlane_b32 s%d, v%d" % (sNONCE, vFL),
             "s_cmp_lg_u32 s%d, 0" % sNONCE, "s_cbranch_scc1 L_%s1" % lab,
             "s_sub_u32 s%d, s%d, 1" % (sSPIN, sSPIN), "s_cmp_lg_u32 s%d, 0" % sSPIN, "s_cbranch_scc1 L_%s0" % lab]
        a += [I(x, opt=lab) for x in b]
        a.append(I("L_%s1:" % lab))
        return a

    def tlb_touch(self, P, items):
        if not self.c["tlb"]: return
        for tensor, sreg in items:
            d = SRD[tensor]
            P("s_load_dword s%d, s[%d:%d], s%d" % (sDUM, d, d + 1, sreg))

    def p_off(self, role):
        a = lines("s_lshl_b32 s%d, s%d, 2\ns_add_u32 s%d, s%d, s%d\ns_lshl_b32 s%d, s%d, 5" % (sT0, sBQ, sT0, sT0, sW, sT0, sT0))
        a += lines("s_lshl_b32 s%d, s%d, 2\ns_add_u32 s%d, s%d, s%d" % (sT1, sXCD, sT0, sT0, sT1))
        if role == "A": a += lines("s_add_u32 s%d, s%d, s%d" % (sT0, sT0, sQ))
        a += lines("s_mul_i32 s%d, s%d, 3072" % (sT0, sT0))
        return a

    def roleA(self, P):
        c = self.c
        vQ, vS = 64, 32
        aW, aX, aK = 0, 64, 96
        P("s_lshl_b32 s%d, s%d, 2\ns_add_u32 s%d, s%d, s%d" % (sT0, sXCD, sT0, sT0, sQ))
        P("s_lshl_b32 s%d, s%d, 2\ns_add_u32 s%d, s%d, s%d" % (sT1, sBQ, sT1, sT1, sW))
        if c.get("same"): P("s_mov_b32 s%d, 0\ns_mov_b32 s%d, s%d" % (sT0, sT1, sW))
        P("s_mul_i32 s%d, s%d, 384\ns_mul_i32 s%d, s%d, %d\ns_add_u32 s%d, s%d, s%d" % (sWO_, sT0, sT2, sW, 16 * 12288, sWO_, sWO_, sT2))
        P("s_mul_i32 s%d, s%d, %d" % (sPO_, sT1, 32 * 1280))
        P("s_lshl_b32 s%d, s%d, 5\ns_add_u32 s%d, s%d, s%d\ns_mul_i32 s%d, s%d, 12288" % (sKO, sT1, sKO, sKO, sT0, sKO, sKO))
        P("s_mul_i32 s%d, s%d, 6144" % (sWM, sW))
        if c["rot"]:
            P("s_add_u32 s%d, s%d, s%d" % (sT0, sBQ, sQ))
            for k in range(6):
                P("s_add_u32 s%d, s%d, %d\ns_and_b32 s%d, s%d, %d" % (sT1, sT0, k, sT1, sT1, 3 if k < 4 else 1))
                P("s_mul_i32 s%d, s%d, %d\ns_add_u32 s%d, s%d, s%d" % (sRW[k], sT1, 64 * 12288, sRW[k], sRW[k], sWO_))
                P("s_lshl_b32 s%d, s%d, 7\ns_add_u32 s%d, s%d, s%d" % (sRP[k], sT1, sRP[k], sRP[k], sPO_))
        self.tabW(P, "A")
        self.tab128(P, [(vDP, 1280)])
        self.srds(P)
        tp = self.touch_plan("A")
        for g in tp.get(-1, []): P(self.touch(*g))
        def dma_stage(s):
            if c["rot"]:
                k = s % 4 if s < 8 else s - 4
                s0 = s - s % 4
                return self.dmaP("x", vDP, sRP[k], 128 * s0, s % 4, "S%d" % s) + self.dmaW("A", s, sRW[k], s0 * 64 * 12288)
            return self.dmaP("x", vDP, sPO_, 128 * s, s % 4, "S%d" % s) + self.dmaW("A", s, sWO_, s * 64 * 12288)
        for s in range(c["depth"]):
            for a in dma_stage(s): P(a)
        self.nonce_store(P)
        P(self.p_off("A"))
        P("s_and_b32 s%d, s%d, 15\ns_lshl_b32 s%d, s%d, 2\ns_add_u32 s%d, s%d, s%d\ns_mul_i32 s%d, s%d, %d\ns_add_u32 s%d, s%d, %d" %
          (sT1, sI, sT1, sT1, sT1, sT1, sW, sT1, sT1, 8 * SLAB, sT1, sT1, WS_PART))
        self.tlb_touch(P, [("k", sKO), ("ws", sT0), ("ws", sT1), ("out", sPO_)])
        self.tabR(P, "A")
        self.tab128(P, [(vDK, 384)])
        def mfma(s, ks, t, w, p):
            cs = "0" if (s == 0 and ks == 0) else vr(vQ + 16 * t, 16)
            return I("%s %s, %s, %s, %s" % (MF, vr(vQ + 16 * t, 16), ar(w), ar(p), cs))
        kp = c["kpos"]
        def extra_fill(s):
            f = [self.touch(*g) for g in tp.get(s, [])]
            if s == c["chkA"]: f.append(self.nonce_load())
            if c["depth"] >= 3:
                if s == 7: f += self.dmaP("k", vDK, sKO, 0, 2, "K0")
                if s == 8: f += self.dmaP("k", vDK, sKO, 128, 3, "K1")
            elif s == 8: f += self.dmaP("k", vDK, sKO, 0, 2, "K0") + self.dmaP("k", vDK, sKO, 128, 3, "K1")
            if s == 9: f += self.dmaP("k", vDK, sKO, 256, 0, "K2")
            return f
        self.stages(P, "A", 10, 6, dma_stage, mfma, aW, aX, extra_fill, lambda s, ks: [])
        self.stamp(P)
        P(self.nonce_get("A"))
        for g in range(3): P("v_mov_b32 v%d, s%d" % (52 + 4 * g + 3, sNONCE))
        for a, sl in enumerate((2, 3, 0)):
            P("WAITVM K%d" % a)
            P(self.readP(aK + 16 * a, sl, "KF%d" % a))
            for t in (2 * a, 2 * a + 1):
                q = vQ + 16 * t
                for i in range(8):
                    P("v_cvt_pk_bf16_f32 v%d, v%d, v%d" % (q + i, q + 2 * i, q + 2 * i + 1))
            P("WAITLG KF%d" % a)
            for jj in range(4):
                j = 4 * a + jj
                cs = "0" if j == 0 else vr(vS, 16)
                P("%s %s, %s, %s, %s" % (MF, vr(vS, 16), ar(aK + 4 * j), vr(vQ + 16 * (j // 2) + 4 * (j % 2)), cs))
        P(self.p_off("A"))
        P("s_mov_b32 s%d, s%d" % (sT2, sT0))
        self.stamp(P)
        self.softmax(P, vS)
        for g in range(3):
            P("buffer_store_dwordx4 %s, v%d, %s, s%d offen offset:%d %s" % (vr(52 + 4 * g), vL16, srd("ws"), sT2, WS_P + 1024 * g, c["stfl"]))
        self.stamp(P)
        self.reduce(P)

    def softmax(self, P, R):
        m, m2, Q = 48, 49, 64
        PB = [52, 53, 54, 60, 56, 57, 58, 61]
        P("v_max3_f32 v%d, v%d, v%d, v%d" % (m, R, R + 1, R + 2))
        P("v_max3_f32 v%d, v%d, v%d, v%d" % (m2, R + 3, R + 4, R + 5))
        for i in range(6, 14, 4):
            P("v_max3_f32 v%d, v%d, v%d, v%d" % (m, m, R + i, R + i + 1))
            P("v_max3_f32 v%d, v%d, v%d, v%d" % (m2, m2, R + i + 2, R + i + 3))
        P("v_max3_f32 v%d, v%d, v%d, v%d" % (m, m, R + 14, R + 15))
        P("v_max_f32 v%d, v%d, v%d" % (m, m, m2))
        P("v_mov_b32 v%d, v%d" % (m2, m))
        P("v_permlane32_swap_b32 v%d, v%d" % (m, m2))
        P("v_max_f32 v%d, v%d, v%d" % (m, m, m2))
        cval = struct.unpack("<I", struct.pack("<f", 192 ** -0.5 * math.log2(math.e)))[0]
        P("s_mov_b32 s%d, 0x%x" % (sT0, cval))
        P("v_mul_f32 v%d, s%d, v%d" % (m, sT0, m))
        for i in range(16):
            P("v_fma_f32 v%d, v%d, s%d, -v%d" % (R + i, R + i, sT0, m))
        for i in range(16):
            P("v_exp_f32 v%d, v%d" % (R + i, R + i))
        P("v_add_f32 v%d, v%d, v%d" % (Q, R, R + 1))
        P("v_add_f32 v%d, v%d, v%d" % (Q + 1, R + 2, R + 3))
        P("v_add_f32 v%d, v%d, v%d" % (Q + 2, R + 4, R + 5))
        P("v_add_f32 v%d, v%d, v%d" % (Q + 3, R + 6, R + 7))
        for i in range(8, 16):
            P("v_add_f32 v%d, v%d, v%d" % (Q + i % 4, Q + i % 4, R + i))
        P("v_add_f32 v%d, v%d, v%d" % (Q, Q, Q + 1))
        P("v_add_f32 v%d, v%d, v%d" % (Q + 2, Q + 2, Q + 3))
        P("v_add_f32 v%d, v%d, v%d" % (m, Q, Q + 2))
        P("v_mov_b32 v%d, v%d" % (m2, m))
        P("v_permlane32_swap_b32 v%d, v%d" % (m, m2))
        P("v_add_f32 v%d, v%d, v%d" % (m, m, m2))
        P("v_rcp_f32 v%d, v%d" % (m, m))
        for i in range(16):
            P("v_mul_f32 v%d, v%d, v%d" % (R + i, R + i, m))
        for i in range(8):
            P("v_cvt_pk_bf16_f32 v%d, v%d, v%d" % (PB[i], R + 2 * i, R + 2 * i + 1))

    def roleB(self, P):
        c = self.c
        vU = [64, 144]; vTMP = 32
        aW, aV, aU, aP = 0, 64, 96, 216
        P("s_lshl_b32 s%d, s%d, 2" % (sT0, sXCD))
        P("s_lshl_b32 s%d, s%d, 2\ns_add_u32 s%d, s%d, s%d" % (sT1, sBQ, sT1, sT1, sW))
        if c.get("same"): P("s_mov_b32 s%d, 0\ns_mov_b32 s%d, s%d" % (sT0, sT1, sW))
        P("s_mul_i32 s%d, s%d, 245760\ns_mul_i32 s%d, s%d, %d\ns_add_u32 s%d, s%d, s%d" % (sWO_, sT0, sT2, sW, 16 * 1280, sWO_, sWO_, sT2))
        P("s_mul_i32 s%d, s%d, 320\ns_add_u32 s%d, s%d, s%d" % (sT2, sQ, sWO_, sWO_, sT2))
        P("s_lshl_b32 s%d, s%d, 5\ns_add_u32 s%d, s%d, s%d\ns_mul_i32 s%d, s%d, 12288" % (sPO_, sT1, sPO_, sPO_, sT0, sPO_, sPO_))
        P("s_mul_i32 s%d, s%d, 5120" % (sWM, sW))
        if c["rot"]:
            P("s_add_u32 s%d, s%d, s%d" % (sT0, sBQ, sQ))
            for k in range(3):
                P("s_add_u32 s%d, s%d, %d\ns_mul_i32 s%d, s%d, 86\ns_lshr_b32 s%d, s%d, 8\ns_mul_i32 s%d, s%d, 3\ns_sub_u32 s%d, s%d, s%d" %
                  (sT1, sT0, k, sT2, sT1, sT2, sT2, sT2, sT2, sT1, sT1, sT2))
                P("s_mul_i32 s%d, s%d, %d\ns_add_u32 s%d, s%d, s%d" % (sRW[k], sT1, 64 * 1280, sRW[k], sRW[k], sWO_))
                P("s_lshl_b32 s%d, s%d, 7\ns_add_u32 s%d, s%d, s%d" % (sRP[k], sT1, sRP[k], sRP[k], sPO_))
        self.tabW(P, "B")
        self.tab128(P, [(vDP, 384)])
        self.srds(P)
        tp = self.touch_plan("B")
        if c["bdelay"]: P("s_sleep %d" % c["bdelay"])
        for g in tp.get(-1, []): P(self.touch(*g))
        def dma_stage(s):
            h, a = divmod(s, 3)
            if c["rot"]:
                return self.dmaP("v", vDP, sRP[a], h * 12288, s % 4, "S%d" % s) + self.dmaW("B", s, sRW[a], h * 192 * 1280)
            return self.dmaP("v", vDP, sPO_, h * 12288 + 128 * a, s % 4, "S%d" % s) + self.dmaW("B", s, sWO_, s * 64 * 1280)
        for s in range(c["depth"]):
            for a in dma_stage(s): P(a)
        P("s_and_b32 s%d, s%d, 15\ns_lshl_b32 s%d, s%d, 3\ns_add_u32 s%d, s%d, s%d" % (sPST, sI, sPST, sPST, sPST, sPST, sXCD))
        P("s_lshl_b32 s%d, s%d, 2\ns_add_u32 s%d, s%d, s%d\ns_mul_i32 s%d, s%d, %d\ns_add_u32 s%d, s%d, %d" % (sPST, sPST, sPST, sPST, sW, sPST, sPST, SLAB, sPST, sPST, WS_PART))
        P(self.p_off("B"))
        self.tlb_touch(P, [("ws", sT0), ("ws", sPST)])
        self.tabR(P, "B")
        def mfma(s, ks, t, w, p):
            u = vU[(s // 3) % 2] + 16 * t
            cs = "0" if (s % 3 == 0 and ks == 0) else vr(u, 16)
            return I("%s %s, %s, %s, %s" % (MF, vr(u, 16), ar(p), ar(w), cs))
        def extra_fill(s):
            f = [self.touch(*g) for g in tp.get(s, [])]
            if s == c["chkB"]: f.append(self.nonce_load())
            if s == c["preP"]:
                f.append(self.p_off("A") + lines("v_lshlrev_b32 v%d, 7, v%d\ns_mov_b64 exec, 0xffffff" % (vT[0], vLANE)) +
                         [I("buffer_load_dword a255, v%d, %s, s%d offen" % (vT[0], srd("ws"), sT0), tag="TCH"), I("s_mov_b64 exec, -1")])
            if s == c["preS"]:
                f.append(lines("v_lshlrev_b32 v%d, 7, v%d\ns_add_u32 s%d, s%d, 6144" % (vT[0], vLANE, sT0, sPST)) +
                         [I("buffer_load_dword a255, v%d, %s, s%d offen" % (vT[0], srd("ws"), sPST), tag="TCH"),
                          I("buffer_load_dword a255, v%d, %s, s%d offen" % (vT[0], srd("ws"), sT0), tag="TCH")])
            return f
        def extra_comp(s, ks):
            h, a = divmod(s, 3)
            if h == 0: return []
            n = 4 * a + ks - 1
            if n < 0 or n >= 10: return []
            t, half = divmod(n, 2)
            u = vU[(h - 1) % 2] + 16 * t + 8 * half
            r = []
            for i in range(4):
                r.append([I("v_cvt_pk_bf16_f32 v%d, v%d, v%d" % (vTMP + (4 * n + i) % 8, u + 2 * i, u + 2 * i + 1)),
                          I("v_accvgpr_write_b32 a%d, v%d" % (aU + 40 * (h - 1) + 8 * t + 4 * half + i, vTMP + (4 * n + i) % 8))])
            return r
        self.stages(P, "B", 12, 5, dma_stage, mfma, aW, aV, extra_fill, extra_comp)
        self.stamp(P)
        P(self.nonce_get("B"))
        P(self.p_off("B"))
        vP, vP2 = 224, 40
        def ploads():
            for h in range(4):
                so = sSOFF[h]
                for g in range(3):
                    d = vP + 8 * h + 4 * g if g < 2 else vP2 + 4 * h
                    P(I("buffer_load_dwordx4 %s, v%d, %s, s%d offen offset:%d %s" % (vr(d), vL16, srd("ws"), so, WS_P + 1024 * g, c["pollfl"]), tag="PL%d" % h))
        for h in range(4): P("s_add_u32 s%d, s%d, %d" % (sSOFF[h], sT0, 3072 * h))
        P("s_mov_b32 s%d, %d" % (sSPIN, c["spin"]))
        if c["pdelay"]: P("s_sleep %d" % c["pdelay"])
        ploads()
        u3 = vU[1]
        for t in range(5):
            for i in range(8):
                P("v_cvt_pk_bf16_f32 v%d, v%d, v%d" % (u3 + 16 * t + i, u3 + 16 * t + 2 * i, u3 + 16 * t + 2 * i + 1))
        GR = [32, 36, 56, 60] + [u3 + 16 * t + 8 + 4 * k for t in range(5) for k in range(2)]
        for g in range(14): P("v_mov_b32 v%d, s%d" % (GR[g] + 3, sNONCE))
        P("v_and_b32 v%d, 28, v%d\nv_lshlrev_b32 v%d, 5, v%d" % (vDW[0], vLANE, vDW[0], vDW[0]))
        P("v_and_b32 v%d, 32, v%d\nv_lshl_or_b32 v%d, v%d, 1, v%d" % (vDW[1], vLANE, vDW[0], vDW[1], vDW[0]))
        P("v_and_b32 v%d, 3, v%d\nv_lshl_or_b32 v%d, v%d, 4, v%d" % (vDW[1], vLANE, vDW[0], vDW[1], vDW[0]))
        self.stamp(P)
        P("s_branch L_pl2")
        P("L_pl0:")
        ploads()
        P("L_pl2:")
        t0, t1 = vT[0], vT[1]
        P("s_waitcnt vmcnt(0)")
        tags = [vP + 8 * h + 4 * g + 3 for h in range(4) for g in range(2)] + [vP2 + 4 * h + 3 for h in range(4)]
        P("v_min3_u32 v%d, v%d, v%d, v%d" % (t0, tags[0], tags[1], tags[2]))
        P("v_max3_u32 v%d, v%d, v%d, v%d" % (t1, tags[0], tags[1], tags[2]))
        for i in range(3, 11, 2):
            P("v_min3_u32 v%d, v%d, v%d, v%d" % (t0, t0, tags[i], tags[i + 1]))
            P("v_max3_u32 v%d, v%d, v%d, v%d" % (t1, t1, tags[i], tags[i + 1]))
        P("v_min3_u32 v%d, v%d, v%d, s%d" % (t0, t0, tags[11], sNONCE))
        P("v_max3_u32 v%d, v%d, v%d, s%d" % (t1, t1, tags[11], sNONCE))
        P("v_cmp_ne_u32 vcc, v%d, v%d" % (t0, t1))
        P("s_nop 1\ns_cbranch_vccz L_pl1")
        P("s_sub_u32 s%d, s%d, 1\ns_cmp_lg_u32 s%d, 0\ns_cbranch_scc1 L_pl0" % (sSPIN, sSPIN, sSPIN))
        P("L_pl1:")
        for h in range(4):
            for m in range(2):
                P("v_mov_b32 v%d, v%d" % (vP + 8 * h + 4 * m + 3, vP2 + 4 * h + m))
        self.stamp(P)
        vO = vU[0]
        fl = c["stfl"]
        def pu(t):
            r = []
            for h in range(4):
                for m in range(2):
                    ua = ar(aU + 40 * h + 8 * t + 4 * m) if h < 3 else vr(u3 + 16 * t + 4 * m)
                    cs = "0" if (h == 0 and m == 0) else vr(vO + 16 * t, 16)
                    r.append([I("%s %s, %s, %s, %s" % (MF, vr(vO + 16 * t, 16), ua, vr(vP + 8 * h + 4 * m), cs))])
            return r
        for k in range(4): P("s_add_u32 s%d, s%d, %d" % (sSOFF[k], sPST, 4096 * k))
        vSA = vDW[0]
        def fin(t):
            o = vO + 16 * t
            r = []
            for i in range(8):
                j = 8 * t + i
                g = j // 3
                a = [I("v_cvt_pk_bf16_f32 v%d, v%d, v%d" % (GR[g] + j % 3, o + 2 * i, o + 2 * i + 1))]
                if j % 3 == 2 or j == 39:
                    a.append(I("buffer_store_dwordx4 %s, v%d, %s, s%d offen offset:%d %s" % (vr(GR[g]), vSA, srd("ws"), sSOFF[g // 4], 1024 * (g % 4), fl), tag="OST"))
                r.append(a)
            return r
        for t in range(5):
            at = pu(t)
            if t: at = interleave(at, fin(t - 1), 3, 8)
            for a in at: P(a)
        for a in fin(4): P(a)
        self.stamp(P)

    def reduce(self, P):
        c = self.c
        T, b = 2, 3
        ln = vLANE
        NE = c["ne"]
        la = 5
        P("v_and_b32 v%d, 3, v%d" % (T, ln))
        P("v_mul_u32_u24 v%d, 1280, v%d" % (T, T))
        P("v_bfe_u32 v%d, v%d, 2, 1" % (b, ln))
        P("v_mul_u32_u24 v%d, 160, v%d" % (b, b))
        P("v_add_u32 v%d, v%d, v%d" % (b, b, T))
        P("v_lshrrev_b32 v%d, 3, v%d" % (T, ln))
        P("v_mad_u32_u24 v%d, v%d, 12, v%d" % (b, T, b))
        P("v_and_b32 v%d, 7, v%d\nv_lshlrev_b32 v%d, 4, v%d" % (la, ln, la, la))
        P("v_lshl_or_b32 v%d, v%d, 10, v%d" % (la, T, la))
        if c["outlds"]:
            P("v_and_b32 v10, 3, v%d\nv_mul_u32_u24 v10, 960, v10\nv_sub_u32 v10, v%d, v10\nv_add_u32 v10, s%d, v10" % (ln, b, sPB))
            P("v_add_u32 v11, s%d, v%d" % (sPB, vL16))
            P("v_mul_u32_u24 v12, 3277, v%d\nv_lshrrev_b32 v12, 16, v12\nv_mul_u32_u24 v12, 960, v12\nv_add_u32 v12, v12, v%d" % (ln, vL16))
            P("v_add_u32 v13, %d, v%d" % (3 * 960 + 1024, vL16))
        so, sg, sb = sSOFF[0], sSOFF[1], sSOFF[2]
        P("s_and_b32 s%d, s%d, 4\ns_and_b32 s%d, s%d, 1\ns_lshl_b32 s%d, s%d, 1\ns_or_b32 s%d, s%d, s%d" % (sT0, sXCD, sT1, sXCD, sT1, sT1, sT0, sT0, sT1))
        P("s_bfe_u32 s%d, s%d, 0x10001\ns_or_b32 s%d, s%d, s%d" % (sT1, sXCD, sT0, sT0, sT1))
        P("s_lshl_b32 s%d, s%d, 2\ns_add_u32 s%d, s%d, s%d\ns_lshl_b32 s%d, s%d, 3\ns_add_u32 s%d, s%d, s%d\ns_mul_i32 s%d, s%d, %d" % (so, sBQ, so, so, sW, so, so, so, so, sT0, so, so, 4 * 1280))
        P("s_mul_i32 s%d, s%d, 320\ns_add_u32 s%d, s%d, s%d" % (sT1, sQ, so, so, sT1))
        P("s_and_b32 s%d, s%d, 15\ns_lshl_b32 s%d, s%d, 5\ns_add_u32 s%d, s%d, s%d\ns_mul_i32 s%d, s%d, %d\ns_add_u32 s%d, s%d, %d" %
          (sb, sI, sb, sb, sb, sb, sW, sb, sb, SLAB, sb, sb, WS_PART))
        ld = c["pollfl"]
        cn = 4
        P("v_and_b32 v%d, 7, v%d\nv_mul_u32_u24 v%d, %d, v%d\nv_add_u32 v%d, 124, v%d" % (cn, ln, cn, 4 * SLAB, cn, cn, cn))
        sE, sL = sg, sSOFF[3]
        P("s_lshl_b32 s%d, s%d, 7\ns_add_u32 s%d, s%d, s%d\ns_add_u32 s%d, s%d, %d" % (sE, sXCD, sE, sE, sb, sL, sE, 1024 * NE))
        def setexec(n):
            if n >= 64: P("s_mov_b64 exec, -1")
            else: P("s_mov_b32 exec_hi, 0x%x" % ((1 << (n - 32)) - 1))
        def canary(lab, g):
            P("s_mov_b32 s%d, %d" % (sSPIN, c["spin"]))
            P("s_add_u32 s%d, s%d, %d" % (sT0, sE, 1024 * g))
            P("L_%s0:" % lab)
            P("buffer_load_dword v8, v%d, %s, s%d offen %s\ns_waitcnt vmcnt(0)" % (cn, srd("ws"), sT0, ld))
            P("v_cmp_ne_u32 vcc, s%d, v8\ns_nop 1\ns_cbranch_vccz L_%s1" % (sNONCE, lab))
            if c["asleep"]: P("s_sleep %d" % c["asleep"])
            P("s_sub_u32 s%d, s%d, 1\ns_cmp_lg_u32 s%d, 0\ns_cbranch_scc1 L_%s0" % (sSPIN, sSPIN, sSPIN, lab))
            P("L_%s1:" % lab)
        def loads(D, sbase, tag):
            P("s_mov_b32 s%d, s%d" % (sT1, sbase))
            for x in range(8):
                P(I("buffer_load_dwordx4 %s, v%d, %s, s%d offen %s" % (vr(D + 4 * x), la, srd("ws"), sT1, ld), tag="%s%d" % (tag, x)))
                if x < 7: P("s_add_u32 s%d, s%d, %d" % (sT1, sT1, 4 * SLAB))
        def summ(lab, D, E, sbase, tag):
            P("s_mov_b32 s%d, %d" % (sSPIN, c["spin"]))
            P("L_%s0:" % lab)
            for x in range(8):
                if tag: P("WAITVM %s%d" % (tag, x))
                d = D + 4 * x
                e = E if x == 0 else E + 6
                for i in range(3):
                    P("v_lshlrev_b32 v%d, 16, v%d" % (e + 2 * i, d + i))
                    P("v_and_b32 v%d, 0xffff0000, v%d" % (e + 2 * i + 1, d + i))
                if x == 0:
                    P("v_xor_b32 v8, s%d, v%d" % (sNONCE, d + 3))
                else:
                    P("v_xor_b32 v9, s%d, v%d" % (sNONCE, d + 3))
                    for i in range(0, 6, 2):
                        P("v_pk_add_f32 v[%d:%d], v[%d:%d], v[%d:%d]" % (E + i, E + i + 1, E + i, E + i + 1, e + i, e + i + 1))
                    P("v_or_b32 v8, v8, v9")
            P("v_cmp_ne_u32 vcc, 0, v8")
            for i in range(3):
                dst = E + 12 + i + (1 if (tag and i) else 0)
                P("v_cvt_pk_bf16_f32 v%d, v%d, v%d" % (dst, E + 2 * i, E + 2 * i + 1))
            P("s_cbranch_vccz L_%s1" % lab)
            Q = Prog()
            P_save = P
            n0 = len(P.ins)
            loads(D, sbase, "zz")
            P("s_waitcnt vmcnt(0)")
            P("s_sub_u32 s%d, s%d, 1\ns_cmp_lg_u32 s%d, 0\ns_cbranch_scc1 L_%s0" % (sSPIN, sSPIN, sSPIN, lab))
            for x in P.ins[n0:]: x.opt = lab
            P("L_%s1:" % lab)
        canary("ce", NE - 1 - c["leadE"])
        setexec(8 * NE)
        loads(64, sE, "RE")
        setexec(64)
        self.stamp(P)
        canary("cl", 13 - c["leadL"])
        self.stamp(P)
        setexec(8 * (14 - NE))
        loads(96, sL, "RL")
        setexec(8 * NE)
        summ("se", 64, 128, sE, None)
        setexec(8 * (14 - NE))
        summ("sl", 96, 144, sL, "RL")
        ofl = c["outfl"]
        if c["outlds"]:
            P("ds_write_b32 v10, v156 offset:%d" % (12 * NE))
            P("ds_write2_b32 v10, v158, v159 offset0:%d offset1:%d" % (3 * NE + 1, 3 * NE + 2))
            setexec(8 * NE)
            P("ds_write_b32 v10, v140")
            P("ds_write2_b32 v10, v141, v142 offset0:1 offset1:2")
            setexec(64)
            P("ds_read_b128 v[64:67], v11")
            P("ds_read_b128 v[68:71], v11 offset:1024")
            P("s_waitcnt lgkmcnt(1)")
            P("buffer_store_dwordx4 v[64:67], v12, %s, s%d offen %s" % (srd("out"), so, ofl))
            P("s_mov_b64 exec, 0xffff")
            P("s_waitcnt lgkmcnt(0)")
            P("buffer_store_dwordx4 v[68:71], v13, %s, s%d offen %s" % (srd("out"), so, ofl))
        else:
            P("buffer_store_dword v156, v%d, %s, s%d offen offset:%d %s" % (b, srd("out"), so, 12 * NE, ofl))
            setexec(8 * (13 - NE))
            P("buffer_store_dwordx2 v[158:159], v%d, %s, s%d offen offset:%d %s" % (b, srd("out"), so, 12 * NE + 4, ofl))
            setexec(8 * NE)
            P("buffer_store_dwordx3 v[140:142], v%d, %s, s%d offen %s" % (b, srd("out"), so, ofl))
        if c["outwait"]: P("s_waitcnt vmcnt(0)")
        self.stamp(P)

    def fin(self, P):
        if self.c.get("nomfma"):
            P.ins = [x for x in P.ins if not x.txt.startswith("v_mfma")]
        return P.finalize()

    def main_kernel(self):
        P0 = Prog(); self.prologue(P0, "L_end")
        P0("s_cmp_ge_u32 s%d, 16\ns_cbranch_scc1 L_roleB" % sI)
        n0 = self.nst
        txt = self.fin(P0)
        for role in "AB":
            P = Prog(); self.nst = n0
            if role == "B": P("L_roleB:")
            (self.roleA if role == "A" else self.roleB)(P)
            self.dump_stamps(P, 0)
            if role == "A": P("s_endpgm")
            txt += self.fin(P)
        txt += "L_end:\n    s_endpgm\n"
        return txt

    def build(self):
        c = self.c
        ks = [(NAME + "_kernel", self.main_kernel, 512, 163840)]
        txt = HDR
        if len(ks) == 1:
            txt += "; @launch grid=(256,1,1) block=(256,1,1) lds=163840\n"
        else:
            for (lab, _, _, lds) in ks:
                txt += "; @launch kernel=%s grid=(256,1,1) block=(256,1,1) lds=%d\n" % (lab, lds)
        txt += '.amdgcn_target "amdgcn-amd-amdhsa--gfx950"\n.text\n'
        kds = ""
        for (lab, body, vg, _) in ks:
            txt += ".globl %s\n.p2align 8\n.type %s,@function\n%s:\n" % (lab, lab, lab) + body()
            acc = 256 if vg > 256 else vg
            kds += (".p2align 6\n.amdhsa_kernel %s\n  .amdhsa_next_free_vgpr %d\n  .amdhsa_next_free_sgpr 102\n  .amdhsa_accum_offset %d\n"
                    "  .amdhsa_group_segment_fixed_size 0\n  .amdhsa_kernarg_size 64\n  .amdhsa_user_sgpr_count 2\n"
                    "  .amdhsa_user_sgpr_kernarg_segment_ptr 1\n  .amdhsa_system_sgpr_workgroup_id_x 1\n.end_amdhsa_kernel\n") % (lab, vg, acc)
        txt += '.section .rodata,"a"\n' + kds
        return txt

if __name__ == "__main__":
    out = sys.argv[1]
    kw = {}
    for a in sys.argv[2:]:
        k, v = a.split("=", 1)
        kw[k] = int(v) if v.lstrip("-").isdigit() else v
    open(out, "w").write(Gen(**kw).build())
```
